```python
import torch

def _softmax(x, axis=-1):
    return torch.softmax(x, dim=axis)
def _gelu(x):
    return torch.nn.functional.gelu(x, approximate="tanh")
def _silu(x):
    return torch.nn.functional.silu(x)
def _sigmoid(x):
    return torch.sigmoid(x)
def _layernorm(x, axis=-1, eps=1e-5):
    m = x.mean(dim=axis, keepdim=True)
    v = x.var(dim=axis, keepdim=True, unbiased=False)
    return (x - m) / torch.sqrt(v + eps)
def _scatter_add(tgt, idx, src, axis=0):
    return tgt.clone().index_add_(axis, idx, src)
def _segment_sum(src, seg, n):
    out = torch.zeros((n,) + src.shape[1:], dtype=src.dtype)
    return out.index_add_(0, seg, src)
def _pad(x, pw):
    flat = tuple(v for pair in reversed(pw) for v in pair)
    return torch.nn.functional.pad(x, flat)

kernel_name = 'standalone__standard_2d_1d_3d_conv__vision'

def setup_inputs():

    _w = (lambda a: (lambda t: t.to(torch.bfloat16) if t.is_floating_point() else t)(torch.as_tensor(a)))
    H = W = 256
    C = 384
    K = 1
    return {
        "x": _w((lambda *s: torch.randn(*s, dtype=torch.bfloat16) * 0.05)(1, H, W, C)),
        "w": _w((lambda *s: torch.randn(*s, dtype=torch.bfloat16) * 0.05)(K, K, C, C)),
        "b": _w((lambda *s: torch.randn(*s, dtype=torch.bfloat16) * 0.05)(C)),
    }

def reference(x, w, b):
    B, H, W, Cin = x.shape
    K = w.shape[0]
    pl = (K - 1) // 2
    pr = K // 2
    xp = _pad(x, ((0, 0), (pl, pr), (pl, pr), (0, 0)))
    out = sum(
        torch.einsum('bhwc,cd->bhwd', xp[:, i:i+H, j:j+W, :], w[i, j])
        for i in range(K) for j in range(K)
    )
    return out + b[None, None, None, :]
```

```python
import sys

NAME = "standalone__standard_2d_1d_3d_conv__vision_kernel"
HEADER = open("standalone__standard_2d_1d_3d_conv__vision.s.ref").read().split("; Override launch")[0]

M = 65536; K = 384; N = 384
ROWB = 768
NWG = 256
ROWS_PER_WG = M // NWG
TILE = 32
NT = ROWS_PER_WG // TILE
R = 5
TILEB = TILE * ROWB
STAGE0 = R * TILEB
STAGEW = 6144
LDS = STAGE0 + 4 * STAGEW

out = []
def e(s): out.append("    " + s)
def lab(s): out.append(s + ":")
def c(s): out.append("    ; " + s)

class Cnt:
    def __init__(self): self.ops = []
    def issue(self, tag): self.ops.append(tag)
    def n_after(self, tag):
        idx = max(i for i, t in enumerate(self.ops) if t == tag)
        return len(self.ops) - 1 - idx
vm = Cnt(); lg = Cnt()

def wait_vm(tag):
    n = min(vm.n_after(tag), 63)
    e(f"s_waitcnt vmcnt({n})")
def wait_lg(tag):
    n = lg.n_after(tag); assert n <= 15, n
    e(f"s_waitcnt lgkmcnt({n})")

def wfrag(f):
    if f < 64: return f"a[{4*f}:{4*f+3}]"
    b = 224 + 4*(f-64); return f"v[{b}:{b+3}]"
def wfrag_half(f, jj):
    if f < 64: return f"a[{4*f+2*jj}:{4*f+2*jj+1}]"
    b = 224 + 4*(f-64) + 2*jj; return f"v[{b}:{b+1}]"
BIAS = 176
ACC = 128
BFR = 104
NBF = 6
EPI = 80
V_LANE = 1
V_T0, V_T1, V_T2, V_T3 = 2, 3, 4, 5
V_XOFF = 8
V_QOFF = 14
V_BBASE = 20
V_BCUR = 28
V_STW = 36
V_STL = 37
V_TRB = 38
V_BOFF = 39
S_X, S_W, S_B, S_O = 8, 12, 16, 20
S_WAVE = 24
S_ROW0 = 25
S_SOFF = 26
S_STAGE = 27
S_TMP = 28
S_M0B = 29

e("s_cmp_ge_u32 s2, 256")
e("s_cbranch_scc1 L_end")
e("s_load_dwordx4 s[36:39], s[0:1], 0")
e("s_load_dwordx4 s[40:43], s[0:1], 16")
e("v_and_b32 v1, 63, v0")
e("v_lshrrev_b32 v2, 6, v0")
e("s_nop 0")
e(f"v_readfirstlane_b32 s{S_WAVE}, v2")
e(f"s_mul_i32 s{S_ROW0}, s2, {ROWS_PER_WG*ROWB}")
e(f"s_mul_i32 s{S_STAGE}, s{S_WAVE}, {STAGEW}")
e(f"s_add_u32 s{S_STAGE}, s{S_STAGE}, {STAGE0}")
e(f"s_mul_i32 s{S_M0B}, s{S_WAVE}, {6*1024}")
e("s_waitcnt lgkmcnt(0)")
def srd(d, lo, size):
    e(f"s_mov_b32 s{d}, s{lo}")
    e(f"s_and_b32 s{d+1}, s{lo+1}, 0xffff")
    e(f"s_mov_b32 s{d+2}, {size}")
    e(f"s_mov_b32 s{d+3}, 0x00020000")
srd(S_X, 36, M*ROWB)
srd(S_W, 38, K*ROWB)
srd(S_B, 40, N*2)
srd(S_O, 42, M*ROWB)

e(f"s_mul_i32 s{S_TMP}, s{S_WAVE}, 384")
e(f"s_movk_i32 s30, 1366")
e(f"s_movk_i32 s31, 48")
for j in range(6):
    e(f"v_add_u32 v{V_T0}, s{S_TMP}, v{V_LANE}")
    if j: e(f"v_add_u32 v{V_T0}, {64*j}, v{V_T0}")
    e(f"v_mul_u32_u24 v{V_T1}, s30, v{V_T0}")
    e(f"v_lshrrev_b32 v{V_T1}, 16, v{V_T1}")
    e(f"v_mul_u32_u24 v{V_T2}, s31, v{V_T1}")
    e(f"v_sub_u32 v{V_T2}, v{V_T0}, v{V_T2}")
    e(f"v_and_b32 v{V_T3}, 15, v{V_T1}")
    e(f"v_xor_b32 v{V_T2}, v{V_T2}, v{V_T3}")
    e(f"v_lshlrev_b32 v{V_T2}, 4, v{V_T2}")
    e(f"v_mul_u32_u24 v{V_T1}, 0x300, v{V_T1}")
    e(f"v_add_u32 v{V_XOFF+j}, v{V_T1}, v{V_T2}")

def dma_tile(t):
    buf = t % R
    e(f"s_add_u32 s{S_SOFF}, s{S_ROW0}, {t*TILEB}")
    for j in range(6):
        e(f"s_add_u32 m0, s{S_M0B}, {buf*TILEB + j*1024}")
        e("s_nop 0")
        e(f"buffer_load_dwordx4 v{V_XOFF+j}, s[{S_X}:{S_X+3}], s{S_SOFF} offen lds")
        vm.issue(f"x{t}")
dma_tile(0); dma_tile(1)

e(f"s_mul_i32 s{S_TMP}, s{S_WAVE}, 192")
e(f"s_movk_i32 s30, 5462")
for j in range(6):
    if j: e(f"v_add_u32 v{V_T0}, {64*j}, v{V_LANE}")
    else: e(f"v_mov_b32 v{V_T0}, v{V_LANE}")
    e(f"v_mul_u32_u24 v{V_T1}, s30, v{V_T0}")
    e(f"v_lshrrev_b32 v{V_T1}, 16, v{V_T1}")
    e(f"v_mul_u32_u24 v{V_T2}, 12, v{V_T1}")
    e(f"v_sub_u32 v{V_T2}, v{V_T0}, v{V_T2}")
    e(f"v_lshlrev_b32 v{V_T2}, 4, v{V_T2}")
    e(f"v_mul_u32_u24 v{V_T1}, 0x300, v{V_T1}")
    e(f"v_add3_u32 v{V_QOFF+j}, v{V_T1}, v{V_T2}, s{S_TMP}")
for p in range(12):
    e(f"s_mov_b32 s{S_SOFF}, {p*TILEB}")
    for j in range(6):
        e(f"buffer_load_dwordx4 {wfrag(6*p+j)}, v{V_QOFF+j}, s[{S_W}:{S_W+3}], s{S_SOFF} offen")
        vm.issue(f"w{p}")
e(f"v_lshrrev_b32 v{V_T0}, 5, v{V_LANE}")
e(f"v_mul_u32_u24 v{V_T1}, 96, v{V_T0}")
e(f"v_add_u32 v{V_BOFF}, s{S_TMP}, v{V_T1}")
for j in range(6):
    e(f"buffer_load_dwordx4 v[{EPI+4*j}:{EPI+4*j+3}], v{V_BOFF}, s[{S_B}:{S_B+3}], 0 offen offset:{16*j}")
    vm.issue("bias")
dma_tile(2); dma_tile(3)

e(f"v_lshlrev_b32 v{V_STL}, 4, v{V_LANE}")
e(f"v_add_u32 v{V_STL}, s{S_STAGE}, v{V_STL}")
e(f"v_and_b32 v{V_T1}, 31, v{V_LANE}")
e(f"v_mul_u32_u24 v{V_T1}, 192, v{V_T1}")
e(f"v_mul_u32_u24 v{V_T2}, 96, v{V_T0}")
e(f"v_add3_u32 v{V_STW}, v{V_T1}, v{V_T2}, s{S_STAGE}")
e(f"v_bfe_u32 v{V_T1}, v{V_LANE}, 2, 2")
e(f"v_lshl_add_u32 v{V_T1}, v{V_T0}, 3, v{V_T1}")
e(f"v_mul_u32_u24 v{V_T1}, 192, v{V_T1}")
e(f"v_and_b32 v{V_T2}, 1, v{V_LANE}")
e(f"v_mul_u32_u24 v{V_T2}, 96, v{V_T2}")
e(f"v_add_u32 v{V_T1}, v{V_T1}, v{V_T2}")
e(f"v_bfe_u32 v{V_T2}, v{V_LANE}, 1, 1")
e(f"v_bfe_u32 v{V_T3}, v{V_LANE}, 4, 1")
e(f"v_lshl_add_u32 v{V_T2}, v{V_T3}, 1, v{V_T2}")
e(f"v_lshlrev_b32 v{V_T2}, 3, v{V_T2}")
e(f"v_add3_u32 v{V_TRB}, v{V_T1}, v{V_T2}, s{S_STAGE}")
e(f"v_and_b32 v{V_T1}, 31, v{V_LANE}")
e(f"v_and_b32 v{V_T2}, 15, v{V_LANE}")
e(f"v_xor_b32 v{V_T2}, v{V_T2}, v{V_T0}")
e(f"v_lshlrev_b32 v{V_T2}, 4, v{V_T2}")
e(f"v_mul_u32_u24 v{V_T1}, 0x300, v{V_T1}")
e(f"v_add_u32 v{V_BBASE}, v{V_T1}, v{V_T2}")
for sp in range(1, 8):
    e(f"v_xor_b32 v{V_BBASE+sp}, {32*sp}, v{V_BBASE}")

for p in range(12):
    wait_vm(f"w{p}")
    for j in range(6):
        e(f"ds_write_b128 v{V_STL}, {wfrag(6*p+j)} offset:{1024*j}")
        lg.issue("ww")
    e("s_waitcnt lgkmcnt(0)")
    for ss in range(2):
        for T in range(3):
            f = (2*p+ss)*3 + T
            for jj in range(2):
                e(f"ds_read_b64_tr_b16 {wfrag_half(f, jj)}, v{V_TRB} offset:{(16*ss+4*jj)*192 + 32*T}")
                lg.issue("wr")
    e("s_waitcnt lgkmcnt(0)")
wait_vm("bias")
for i in range(24):
    e(f"v_lshlrev_b32 v{BIAS+2*i}, 16, v{EPI+i}")
    e(f"v_and_b32 v{BIAS+2*i+1}, 0xffff0000, v{EPI+i}")

for t in range(NT):
    c(f"---- tile {t} ----")
    wait_vm(f"x{t}")
    e("s_barrier")
    if t + 4 < NT: dma_tile(t + 4)
    buf = t % R
    for sp in range(8):
        e(f"v_add_u32 v{V_BCUR+sp}, {buf*TILEB}, v{V_BBASE+sp}")
    def bread(s):
        e(f"ds_read_b128 v[{BFR+4*(s%NBF)}:{BFR+4*(s%NBF)+3}], v{V_BCUR+(s%8)} offset:{256*(s//8)}")
        lg.issue(f"b{s}")
    PF = NBF - 1
    for s in range(PF): bread(s)
    for s in range(24):
        wait_lg(f"b{s}")
        for T in range(3):
            f = 3*s + T
            cc = f"v[{BIAS+16*T}:{BIAS+16*T+15}]" if s == 0 else f"v[{ACC+16*T}:{ACC+16*T+15}]"
            e(f"v_mfma_f32_32x32x16_bf16 v[{ACC+16*T}:{ACC+16*T+15}], {wfrag(f)}, v[{BFR+4*(s%NBF)}:{BFR+4*(s%NBF)+3}], {cc}")
        if s + PF < 24: bread(s + PF)
    e("s_nop 15")
    for i in range(24):
        e(f"v_cvt_pk_bf16_f32 v{EPI+i}, v{ACC+2*i}, v{ACC+2*i+1}")
    for j in range(6):
        e(f"ds_write_b128 v{V_STW}, v[{EPI+4*j}:{EPI+4*j+3}] offset:{16*j}")
        lg.issue("ew")
    e("s_waitcnt lgkmcnt(0)")
    for j in range(6):
        e(f"ds_read_b128 v[{EPI+4*j}:{EPI+4*j+3}], v{V_STL} offset:{1024*j}")
        lg.issue(f"er{j}")
    e(f"s_add_u32 s{S_SOFF}, s{S_ROW0}, {t*TILEB}")
    for j in range(6):
        wait_lg(f"er{j}")
        e(f"buffer_store_dwordx4 v[{EPI+4*j}:{EPI+4*j+3}], v{V_QOFF+j}, s[{S_O}:{S_O+3}], s{S_SOFF} offen")
        vm.issue(f"st{t}")
lab("L_end")

src = HEADER
src += f"; @launch grid=({NWG},1,1) block=(256,1,1) lds={LDS}\n"
src += '.amdgcn_target "amdgcn-amd-amdhsa--gfx950"\n.text\n'
src += f".globl {NAME}\n.p2align 8\n.type {NAME},@function\n{NAME}:\n"
src += "\n".join(out) + "\n    s_endpgm\n"
src += f'''.section .rodata,"a"
.p2align 6
.amdhsa_kernel {NAME}
  .amdhsa_next_free_vgpr 512
  .amdhsa_next_free_sgpr 64
  .amdhsa_accum_offset 256
  .amdhsa_group_segment_fixed_size 0
  .amdhsa_kernarg_size 48
  .amdhsa_user_sgpr_count 2
  .amdhsa_user_sgpr_kernarg_segment_ptr 1
  .amdhsa_system_sgpr_workgroup_id_x 1
.end_amdhsa_kernel
'''
open(sys.argv[1], "w").write(src)
assert all((s*1366)>>16 == s//48 for s in range(1536))
assert all((q*5462)>>16 == q//12 for q in range(384))
```

```python
import sys

NAME = "standalone__standard_2d_1d_3d_conv__vision_kernel"
HEADER = open("standalone__standard_2d_1d_3d_conv__vision.s.ref").read().split("; Override launch")[0]
INSTR = len(sys.argv) > 2

M = 65536; K = 384; N = 384
ROWB = 768
NWG = 256
ROWS_PER_WG = M // NWG
TILE = 32
NT = ROWS_PER_WG // TILE
R = 5
TILEB = TILE * ROWB
STAGE0 = R * TILEB
STAGEW = 6144
LDS = STAGE0 + 4 * STAGEW

out = []
def e(s): out.append("    " + s)
def lab(s): out.append(s + ":")
def c(s): out.append("    ; " + s)

class Cnt:
    def __init__(self): self.ops = []
    def issue(self, tag): self.ops.append(tag)
    def n_after(self, tag):
        idx = max(i for i, t in enumerate(self.ops) if t == tag)
        return len(self.ops) - 1 - idx
vm = Cnt(); lg = Cnt()
def wait_vm(tag):
    n = min(vm.n_after(tag), 63)
    e(f"s_waitcnt vmcnt({n})")
def wait_lg(tag):
    n = vm_n = lg.n_after(tag)
    n = min(n, 15)
    e(f"s_waitcnt lgkmcnt({n})")

stamp_i = [0]
def stamp():
    if not INSTR: return
    i = stamp_i[0]; stamp_i[0] += 1
    e("s_memtime s[44:45]")
    e("s_waitcnt lgkmcnt(0)")
    e(f"v_mov_b32 v6, s44")
    e(f"buffer_store_dword v6, v7, s[48:51], 0 offen offset:{4*i}")
    vm.issue("stamp")

def wfrag(f):
    if f < 64: return f"a[{4*f}:{4*f+3}]"
    b = 224 + 4*(f-64); return f"v[{b}:{b+3}]"
def wfrag_half(f, jj):
    if f < 64: return f"a[{4*f+2*jj}:{4*f+2*jj+1}]"
    b = 224 + 4*(f-64) + 2*jj; return f"v[{b}:{b+1}]"
BIAS = 176
ACC0 = 80
BFR = 64
NBF = 4
EPI = 40
V_LANE = 1
V_T0, V_T1, V_T2, V_T3 = 2, 3, 4, 5
V_XOFF = 8
V_QOFF = 14
V_BBASE = 20
V_BCUR = 28
V_STW = 36
V_STL = 37
V_TRB = 38
V_BOFF = 39
S_X, S_W, S_B, S_O = 8, 12, 16, 20
S_WAVE = 24
S_ROW0 = 25
S_SOFF = 26
S_STAGE = 27
S_TMP = 28
S_M0B = 29
S_SOFF2 = 32
S_WSL = 33

e("s_cmp_ge_u32 s2, 256")
e("s_cbranch_scc1 L_end")
e("s_load_dwordx4 s[36:39], s[0:1], 0")
e("s_load_dwordx4 s[40:43], s[0:1], 16")
e("v_and_b32 v1, 63, v0")
e("v_lshrrev_b32 v2, 6, v0")
e("s_nop 0")
e(f"v_readfirstlane_b32 s{S_WAVE}, v2")
e(f"s_mul_i32 s{S_ROW0}, s2, {ROWS_PER_WG*ROWB}")
e(f"s_mul_i32 s{S_STAGE}, s{S_WAVE}, {STAGEW}")
e(f"s_add_u32 s{S_STAGE}, s{S_STAGE}, {STAGE0}")
e(f"s_mul_i32 s{S_M0B}, s{S_WAVE}, {6*1024}")
e("s_waitcnt lgkmcnt(0)")
def srd(d, lo, size):
    e(f"s_mov_b32 s{d}, s{lo}")
    e(f"s_and_b32 s{d+1}, s{lo+1}, 0xffff")
    e(f"s_mov_b32 s{d+2}, {size}")
    e(f"s_mov_b32 s{d+3}, 0x00020000")
srd(S_X, 36, M*ROWB)
srd(S_W, 38, K*ROWB)
srd(S_B, 40, N*2)
srd(S_O, 42, M*ROWB)
if INSTR:
    e("s_load_dwordx2 s[48:49], s[0:1], 32")
    e("s_waitcnt lgkmcnt(0)")
    e("s_and_b32 s49, s49, 0xffff")
    e("s_mov_b32 s50, 0x100000")
    e("s_mov_b32 s51, 0x00020000")
    e(f"s_lshl_b32 s46, s2, 2")
    e(f"s_add_u32 s46, s46, s{S_WAVE}")
    e(f"s_lshl_b32 s46, s46, 7")
    e("v_mov_b32 v7, s46")
stamp()

e(f"s_mul_i32 s{S_TMP}, s{S_WAVE}, 384")
e(f"s_movk_i32 s30, 1366")
e(f"s_movk_i32 s31, 48")
for j in range(6):
    e(f"v_add_u32 v{V_T0}, s{S_TMP}, v{V_LANE}")
    if j: e(f"v_add_u32 v{V_T0}, {64*j}, v{V_T0}")
    e(f"v_mul_u32_u24 v{V_T1}, s30, v{V_T0}")
    e(f"v_lshrrev_b32 v{V_T1}, 16, v{V_T1}")
    e(f"v_mul_u32_u24 v{V_T2}, s31, v{V_T1}")
    e(f"v_sub_u32 v{V_T2}, v{V_T0}, v{V_T2}")
    e(f"v_and_b32 v{V_T3}, 15, v{V_T1}")
    e(f"v_xor_b32 v{V_T2}, v{V_T2}, v{V_T3}")
    e(f"v_lshlrev_b32 v{V_T2}, 4, v{V_T2}")
    e(f"v_mul_u32_u24 v{V_T1}, 0x300, v{V_T1}")
    e(f"v_add_u32 v{V_XOFF+j}, v{V_T1}, v{V_T2}")

def dma_one(t, j):
    buf = t % R
    if j == 0: e(f"s_add_u32 s{S_SOFF}, s{S_ROW0}, {t*TILEB}")
    e(f"s_add_u32 m0, s{S_M0B}, {buf*TILEB + j*1024}")
    e("s_nop 0")
    e(f"buffer_load_dwordx4 v{V_XOFF+j}, s[{S_X}:{S_X+3}], s{S_SOFF} offen nt lds")
    vm.issue(f"x{t}")
def dma_tile(t):
    for j in range(6): dma_one(t, j)
dma_tile(0); dma_tile(1)

e(f"s_mul_i32 s{S_TMP}, s{S_WAVE}, 192")
e(f"s_movk_i32 s30, 5462")
for j in range(6):
    if j: e(f"v_add_u32 v{V_T0}, {64*j}, v{V_LANE}")
    else: e(f"v_mov_b32 v{V_T0}, v{V_LANE}")
    e(f"v_mul_u32_u24 v{V_T1}, s30, v{V_T0}")
    e(f"v_lshrrev_b32 v{V_T1}, 16, v{V_T1}")
    e(f"v_mul_u32_u24 v{V_T2}, 12, v{V_T1}")
    e(f"v_sub_u32 v{V_T2}, v{V_T0}, v{V_T2}")
    e(f"v_lshlrev_b32 v{V_T2}, 4, v{V_T2}")
    e(f"v_mul_u32_u24 v{V_T1}, 0x300, v{V_T1}")
    e(f"v_add3_u32 v{V_QOFF+j}, v{V_T1}, v{V_T2}, s{S_TMP}")
e(f"v_lshrrev_b32 v{V_T0}, 5, v{V_LANE}")
e(f"v_mul_u32_u24 v{V_T1}, 96, v{V_T0}")
e(f"v_add_u32 v{V_BOFF}, s{S_TMP}, v{V_T1}")
for j in range(6):
    e(f"buffer_load_dwordx4 v[{EPI+4*j}:{EPI+4*j+3}], v{V_BOFF}, s[{S_B}:{S_B+3}], 0 offen offset:{16*j}")
    vm.issue("bias")
WSLOT0 = 3*TILEB
def wload(p):
    e(f"s_mov_b32 s{S_SOFF2}, {p*TILEB}")
    for j in range(6):
        e(f"s_add_u32 m0, s{S_WSL}, {(p%3)*6144 + j*1024}")
        e("s_nop 0")
        e(f"buffer_load_dwordx4 v{V_QOFF+j}, s[{S_W}:{S_W+3}], s{S_SOFF2} offen lds")
        vm.issue(f"w{p}")
e(f"s_mul_i32 s{S_WSL}, s{S_WAVE}, {3*6144}")
e(f"s_add_u32 s{S_WSL}, s{S_WSL}, {WSLOT0}")
for p in range(3):
    wload(p)
dma_tile(2)

e(f"v_lshlrev_b32 v{V_STL}, 4, v{V_LANE}")
e(f"v_add_u32 v{V_STL}, s{S_STAGE}, v{V_STL}")
e(f"v_and_b32 v{V_T1}, 31, v{V_LANE}")
e(f"v_mul_u32_u24 v{V_T1}, 192, v{V_T1}")
e(f"v_mul_u32_u24 v{V_T2}, 96, v{V_T0}")
e(f"v_add3_u32 v{V_STW}, v{V_T1}, v{V_T2}, s{S_STAGE}")
e(f"v_bfe_u32 v{V_T1}, v{V_LANE}, 2, 2")
e(f"v_lshl_add_u32 v{V_T1}, v{V_T0}, 3, v{V_T1}")
e(f"v_mul_u32_u24 v{V_T1}, 192, v{V_T1}")
e(f"v_and_b32 v{V_T2}, 1, v{V_LANE}")
e(f"v_mul_u32_u24 v{V_T2}, 96, v{V_T2}")
e(f"v_add_u32 v{V_T1}, v{V_T1}, v{V_T2}")
e(f"v_bfe_u32 v{V_T2}, v{V_LANE}, 1, 1")
e(f"v_bfe_u32 v{V_T3}, v{V_LANE}, 4, 1")
e(f"v_lshl_add_u32 v{V_T2}, v{V_T3}, 1, v{V_T2}")
e(f"v_lshlrev_b32 v{V_T2}, 3, v{V_T2}")
e(f"v_add3_u32 v{V_TRB}, v{V_T1}, v{V_T2}, s{S_WSL}")
e(f"v_and_b32 v{V_T1}, 31, v{V_LANE}")
e(f"v_and_b32 v{V_T2}, 15, v{V_LANE}")
e(f"v_xor_b32 v{V_T2}, v{V_T2}, v{V_T0}")
e(f"v_lshlrev_b32 v{V_T2}, 4, v{V_T2}")
e(f"v_mul_u32_u24 v{V_T1}, 0x300, v{V_T1}")
e(f"v_add_u32 v{V_BBASE}, v{V_T1}, v{V_T2}")
for sp in range(1, 8):
    e(f"v_xor_b32 v{V_BBASE+sp}, {32*sp}, v{V_BBASE}")
wait_vm("bias")
for i in range(24):
    e(f"v_lshlrev_b32 v{BIAS+2*i}, 16, v{EPI+i}")
    e(f"v_and_b32 v{BIAS+2*i+1}, 0xffff0000, v{EPI+i}")
stamp()
wait_vm("x1")
e("s_barrier")
for sp in range(8):
    e(f"v_add_u32 v{V_BCUR+sp}, {TILEB}, v{V_BBASE+sp}")
def breadf(tt, s):
    b = BFR + 4*(2*(s%2) + tt)
    a = (V_BBASE if tt == 0 else V_BCUR) + (s%8)
    e(f"ds_read_b128 v[{b}:{b+3}], v{a} offset:{256*(s//8)}")
    lg.issue(f"fb{tt}_{s}")
def wtr(p):
    wait_vm(f"w{p}")
    for ss in range(2):
        for T in range(3):
            f = (2*p+ss)*3 + T
            for jj in range(2):
                e(f"ds_read_b64_tr_b16 {wfrag_half(f, jj)}, v{V_TRB} offset:{(p%3)*6144 + (16*ss+4*jj)*192 + 32*T}")
                lg.issue(f"wr{2*p+ss}")
def fstep(s_):
    e(f"s_waitcnt lgkmcnt({min(15, lg.n_after(f'wr{s_}'), lg.n_after(f'wr{s_|1}'), lg.n_after(f'fb1_{s_}'), lg.n_after(f'fb0_{s_}'))})")
    if s_ % 2 == 0 and s_//2 + 3 < 12: wload(s_//2 + 3)
    if s_ + 1 < 24:
        breadf(0, s_+1); breadf(1, s_+1)
    for tt in range(2):
        acc = ACC0 + 48*tt
        b = BFR + 4*(2*(s_%2) + tt)
        for T in range(3):
            f = 3*s_ + T
            cc = f"v[{BIAS+16*T}:{BIAS+16*T+15}]" if s_ == 0 else f"v[{acc+16*T}:{acc+16*T+15}]"
            e(f"v_mfma_f32_32x32x16_bf16 v[{acc+16*T}:{acc+16*T+15}], {wfrag(f)}, v[{b}:{b+3}], {cc}")
wtr(0)
breadf(0, 0); breadf(1, 0)
for p in range(12):
    fstep(2*p)
    if p + 1 < 12: wtr(p+1)
    fstep(2*p+1)
stamp()

def epi_steps(t):
    acc = ACC0 + 48*(t % 2)
    steps = []
    for j in range(6):
        def f(j=j):
            for i in range(4*j, 4*j+4):
                e(f"v_cvt_pk_bf16_f32 v{EPI+i}, v{acc+2*i}, v{acc+2*i+1}")
            e(f"ds_write_b128 v{V_STW}, v[{EPI+4*j}:{EPI+4*j+3}] offset:{16*j}")
            lg.issue("ew")
        steps.append(f)
    for j in range(6):
        def f(j=j):
            e(f"ds_read_b128 v[{EPI+4*j}:{EPI+4*j+3}], v{V_STL} offset:{1024*j}")
            lg.issue(f"er{j}")
        steps.append(f)
    for j in range(6):
        def f(j=j):
            if j == 0: e(f"s_add_u32 s{S_SOFF2}, s{S_ROW0}, {t*TILEB}")
            wait_lg(f"er{j}")
            e(f"buffer_store_dwordx4 v[{EPI+4*j}:{EPI+4*j+3}], v{V_QOFF+j}, s[{S_O}:{S_O+3}], s{S_SOFF2} offen nt")
            vm.issue(f"st{t}")
        steps.append(f)
    return steps

e("s_nop 15")
e("s_barrier")
for f in epi_steps(0): f()
for t in range(2, NT):
    c(f"---- tile {t} ----")
    acc = ACC0 + 48*(t % 2)
    wait_vm(f"x{t}")
    e("s_barrier")
    stamp()
    buf = t % R
    for sp in range(8):
        e(f"v_add_u32 v{V_BCUR+sp}, {buf*TILEB}, v{V_BBASE+sp}")
    def bread(s):
        e(f"ds_read_b128 v[{BFR+4*(s%NBF)}:{BFR+4*(s%NBF)+3}], v{V_BCUR+(s%8)} offset:{256*(s//8)}")
        lg.issue(f"b{s}")
    PF = NBF - 1
    for s in range(PF): bread(s)
    ep = epi_steps(t-1) if t > 0 else []
    for s in range(24):
        wait_lg(f"b{s}")
        for T in range(3):
            f = 3*s + T
            cc = f"v[{BIAS+16*T}:{BIAS+16*T+15}]" if s == 0 else f"v[{acc+16*T}:{acc+16*T+15}]"
            e(f"v_mfma_f32_32x32x16_bf16 v[{acc+16*T}:{acc+16*T+15}], {wfrag(f)}, v[{BFR+4*(s%NBF)}:{BFR+4*(s%NBF)+3}], {cc}")
            if T == 0 and s + PF < 24: bread(s + PF)
            if T == 1 and t == 2: dma_one(3 + s//6, s % 6)
            if T == 1 and t == 3 and s < 6: dma_one(7, s)
        if ep and 1 <= s <= 18: ep[s-1]()
    stamp()
e("s_nop 15")
for f in epi_steps(NT-1): f()
stamp()
lab("L_end")

src = HEADER
src += f"; @launch grid=({NWG},1,1) block=(256,1,1) lds={LDS}\n"
src += '.amdgcn_target "amdgcn-amd-amdhsa--gfx950"\n.text\n'
src += f".globl {NAME}\n.p2align 8\n.type {NAME},@function\n{NAME}:\n"
src += "\n".join(out) + "\n    s_endpgm\n"
src += f'''.section .rodata,"a"
.p2align 6
.amdhsa_kernel {NAME}
  .amdhsa_next_free_vgpr 512
  .amdhsa_next_free_sgpr 64
  .amdhsa_accum_offset 256
  .amdhsa_group_segment_fixed_size 0
  .amdhsa_kernarg_size 48
  .amdhsa_user_sgpr_count 2
  .amdhsa_user_sgpr_kernarg_segment_ptr 1
  .amdhsa_system_sgpr_workgroup_id_x 1
.end_amdhsa_kernel
'''
open(sys.argv[1], "w").write(src)
```

```python
import sys

NAME = "standalone__standard_2d_1d_3d_conv__vision_kernel"
HEADER = open("standalone__standard_2d_1d_3d_conv__vision.s.ref").read().split("; Override launch")[0]
INSTR = len(sys.argv) > 2

M = 65536; K = 384; N = 384
ROWB = 768
NWG = 256
ROWS_PER_WG = M // NWG
TILE = 32
NT = ROWS_PER_WG // TILE
R = 5
TILEB = TILE * ROWB
STAGE0 = R * TILEB
STAGEW = 6144
LDS = STAGE0 + 4 * STAGEW

out = []
def e(s): out.append("    " + s)
def lab(s): out.append(s + ":")
def c(s): out.append("    ; " + s)

class Cnt:
    def __init__(self): self.ops = []
    def issue(self, tag): self.ops.append(tag)
    def n_after(self, tag):
        idx = max(i for i, t in enumerate(self.ops) if t == tag)
        return len(self.ops) - 1 - idx
vm = Cnt(); lg = Cnt()
def wait_vm(tag):
    n = min(vm.n_after(tag), 63)
    e(f"s_waitcnt vmcnt({n})")
def wait_lg(tag):
    n = vm_n = lg.n_after(tag)
    n = min(n, 15)
    e(f"s_waitcnt lgkmcnt({n})")

stamp_i = [0]
def stamp():
    if not INSTR: return
    i = stamp_i[0]; stamp_i[0] += 1
    e("s_memtime s[44:45]")
    e("s_waitcnt lgkmcnt(0)")
    e(f"v_mov_b32 v6, s44")
    e(f"buffer_store_dword v6, v7, s[48:51], 0 offen offset:{4*i}")
    vm.issue("stamp")

def wfrag(f):
    if f < 64: return f"a[{4*f}:{4*f+3}]"
    b = 224 + 4*(f-64); return f"v[{b}:{b+3}]"
def wfrag_half(f, jj):
    if f < 64: return f"a[{4*f+2*jj}:{4*f+2*jj+1}]"
    b = 224 + 4*(f-64) + 2*jj; return f"v[{b}:{b+1}]"
BIAS = 176
ACC0 = 80
BFR = 64
NBF = 4
EPI = 40
V_LANE = 1
V_T0, V_T1, V_T2, V_T3 = 2, 3, 4, 5
V_XOFF = 8
V_QOFF = 14
V_BBASE = 20
V_BCUR = 28
V_STW = 36
V_STL = 37
V_TRB = 38
V_BOFF = 39
S_X, S_W, S_B, S_O = 8, 12, 16, 20
S_WAVE = 24
S_ROW0 = 25
S_SOFF = 26
S_STAGE = 27
S_TMP = 28
S_M0B = 29
S_SOFF2 = 32
S_WSL = 33

e("s_cmp_ge_u32 s2, 256")
e("s_cbranch_scc1 L_end")
e("s_load_dwordx4 s[36:39], s[0:1], 0")
e("s_load_dwordx4 s[40:43], s[0:1], 16")
e("v_and_b32 v1, 63, v0")
e("v_lshrrev_b32 v2, 6, v0")
e("s_nop 0")
e(f"v_readfirstlane_b32 s{S_WAVE}, v2")
e(f"s_mul_i32 s{S_ROW0}, s2, {ROWS_PER_WG*ROWB}")
e(f"s_mul_i32 s{S_STAGE}, s{S_WAVE}, {STAGEW}")
e(f"s_add_u32 s{S_STAGE}, s{S_STAGE}, {STAGE0}")
e(f"s_mul_i32 s{S_M0B}, s{S_WAVE}, {6*1024}")
e("s_waitcnt lgkmcnt(0)")
def srd(d, lo, size):
    e(f"s_mov_b32 s{d}, s{lo}")
    e(f"s_and_b32 s{d+1}, s{lo+1}, 0xffff")
    e(f"s_mov_b32 s{d+2}, {size}")
    e(f"s_mov_b32 s{d+3}, 0x00020000")
srd(S_X, 36, M*ROWB)
srd(S_W, 38, K*ROWB)
srd(S_B, 40, N*2)
srd(S_O, 42, M*ROWB)
if INSTR:
    e("s_load_dwordx2 s[48:49], s[0:1], 32")
    e("s_waitcnt lgkmcnt(0)")
    e("s_and_b32 s49, s49, 0xffff")
    e("s_mov_b32 s50, 0x100000")
    e("s_mov_b32 s51, 0x00020000")
    e(f"s_lshl_b32 s46, s2, 2")
    e(f"s_add_u32 s46, s46, s{S_WAVE}")
    e(f"s_lshl_b32 s46, s46, 7")
    e("s_mov_b32 s50, 64")
    e("v_mov_b32 v7, s46")
    e("s_memrealtime s[56:57]")
stamp()

e(f"s_mul_i32 s{S_TMP}, s{S_WAVE}, 384")
e(f"s_movk_i32 s30, 1366")
e(f"s_movk_i32 s31, 48")
for j in range(6):
    e(f"v_add_u32 v{V_T0}, s{S_TMP}, v{V_LANE}")
    if j: e(f"v_add_u32 v{V_T0}, {64*j}, v{V_T0}")
    e(f"v_mul_u32_u24 v{V_T1}, s30, v{V_T0}")
    e(f"v_lshrrev_b32 v{V_T1}, 16, v{V_T1}")
    e(f"v_mul_u32_u24 v{V_T2}, s31, v{V_T1}")
    e(f"v_sub_u32 v{V_T2}, v{V_T0}, v{V_T2}")
    e(f"v_and_b32 v{V_T3}, 15, v{V_T1}")
    e(f"v_xor_b32 v{V_T2}, v{V_T2}, v{V_T3}")
    e(f"v_lshlrev_b32 v{V_T2}, 4, v{V_T2}")
    e(f"v_mul_u32_u24 v{V_T1}, 0x300, v{V_T1}")
    e(f"v_add_u32 v{V_XOFF+j}, v{V_T1}, v{V_T2}")

def dma_one(t, j):
    buf = t % R
    if j == 0: e(f"s_add_u32 s{S_SOFF}, s{S_ROW0}, {t*TILEB}")
    e(f"s_add_u32 m0, s{S_M0B}, {buf*TILEB + j*1024}")
    e("s_nop 0")
    e(f"buffer_load_dwordx4 v{V_XOFF+j}, s[{S_X}:{S_X+3}], s{S_SOFF} offen nt lds")
    vm.issue(f"x{t}")
def dma_tile(t):
    for j in range(6): dma_one(t, j)
dma_tile(0); dma_tile(1)

e(f"s_mul_i32 s{S_TMP}, s{S_WAVE}, 192")
e(f"s_movk_i32 s30, 5462")
for j in range(6):
    if j: e(f"v_add_u32 v{V_T0}, {64*j}, v{V_LANE}")
    else: e(f"v_mov_b32 v{V_T0}, v{V_LANE}")
    e(f"v_mul_u32_u24 v{V_T1}, s30, v{V_T0}")
    e(f"v_lshrrev_b32 v{V_T1}, 16, v{V_T1}")
    e(f"v_mul_u32_u24 v{V_T2}, 12, v{V_T1}")
    e(f"v_sub_u32 v{V_T2}, v{V_T0}, v{V_T2}")
    e(f"v_lshlrev_b32 v{V_T2}, 4, v{V_T2}")
    e(f"v_mul_u32_u24 v{V_T1}, 0x300, v{V_T1}")
    e(f"v_add3_u32 v{V_QOFF+j}, v{V_T1}, v{V_T2}, s{S_TMP}")
e(f"v_lshrrev_b32 v{V_T0}, 5, v{V_LANE}")
e(f"v_mul_u32_u24 v{V_T1}, 96, v{V_T0}")
e(f"v_add_u32 v{V_BOFF}, s{S_TMP}, v{V_T1}")
for j in range(6):
    e(f"buffer_load_dwordx4 v[{EPI+4*j}:{EPI+4*j+3}], v{V_BOFF}, s[{S_B}:{S_B+3}], 0 offen offset:{16*j}")
    vm.issue("bias")
WSLOT0 = 3*TILEB
def wload(p):
    e(f"s_mov_b32 s{S_SOFF2}, {p*TILEB}")
    for j in range(6):
        e(f"s_add_u32 m0, s{S_WSL}, {(p%3)*6144 + j*1024}")
        e("s_nop 0")
        e(f"buffer_load_dwordx4 v{V_QOFF+j}, s[{S_W}:{S_W+3}], s{S_SOFF2} offen lds")
        vm.issue(f"w{p}")
e(f"s_mul_i32 s{S_WSL}, s{S_WAVE}, {3*6144}")
e(f"s_add_u32 s{S_WSL}, s{S_WSL}, {WSLOT0}")
for p in range(3):
    wload(p)
dma_tile(2)

e(f"v_lshlrev_b32 v{V_STL}, 4, v{V_LANE}")
e(f"v_add_u32 v{V_STL}, s{S_STAGE}, v{V_STL}")
e(f"v_and_b32 v{V_T1}, 31, v{V_LANE}")
e(f"v_mul_u32_u24 v{V_T1}, 192, v{V_T1}")
e(f"v_mul_u32_u24 v{V_T2}, 96, v{V_T0}")
e(f"v_add3_u32 v{V_STW}, v{V_T1}, v{V_T2}, s{S_STAGE}")
e(f"v_bfe_u32 v{V_T1}, v{V_LANE}, 2, 2")
e(f"v_lshl_add_u32 v{V_T1}, v{V_T0}, 3, v{V_T1}")
e(f"v_mul_u32_u24 v{V_T1}, 192, v{V_T1}")
e(f"v_and_b32 v{V_T2}, 1, v{V_LANE}")
e(f"v_mul_u32_u24 v{V_T2}, 96, v{V_T2}")
e(f"v_add_u32 v{V_T1}, v{V_T1}, v{V_T2}")
e(f"v_bfe_u32 v{V_T2}, v{V_LANE}, 1, 1")
e(f"v_bfe_u32 v{V_T3}, v{V_LANE}, 4, 1")
e(f"v_lshl_add_u32 v{V_T2}, v{V_T3}, 1, v{V_T2}")
e(f"v_lshlrev_b32 v{V_T2}, 3, v{V_T2}")
e(f"v_add3_u32 v{V_TRB}, v{V_T1}, v{V_T2}, s{S_WSL}")
e(f"v_and_b32 v{V_T1}, 31, v{V_LANE}")
e(f"v_and_b32 v{V_T2}, 15, v{V_LANE}")
e(f"v_xor_b32 v{V_T2}, v{V_T2}, v{V_T0}")
e(f"v_lshlrev_b32 v{V_T2}, 4, v{V_T2}")
e(f"v_mul_u32_u24 v{V_T1}, 0x300, v{V_T1}")
e(f"v_add_u32 v{V_BBASE}, v{V_T1}, v{V_T2}")
for sp in range(1, 8):
    e(f"v_xor_b32 v{V_BBASE+sp}, {32*sp}, v{V_BBASE}")
wait_vm("bias")
for i in range(24):
    e(f"v_lshlrev_b32 v{BIAS+2*i}, 16, v{EPI+i}")
    e(f"v_and_b32 v{BIAS+2*i+1}, 0xffff0000, v{EPI+i}")
stamp()
wait_vm("x1")
e("s_barrier")
for sp in range(8):
    e(f"v_add_u32 v{V_BCUR+sp}, {TILEB}, v{V_BBASE+sp}")
def breadf(tt, s):
    b = BFR + 4*(2*(s%2) + tt)
    a = (V_BBASE if tt == 0 else V_BCUR) + (s%8)
    e(f"ds_read_b128 v[{b}:{b+3}], v{a} offset:{256*(s//8)}")
    lg.issue(f"fb{tt}_{s}")
def wtr(p):
    wait_vm(f"w{p}")
    for ss in range(2):
        for T in range(3):
            f = (2*p+ss)*3 + T
            for jj in range(2):
                e(f"ds_read_b64_tr_b16 {wfrag_half(f, jj)}, v{V_TRB} offset:{(p%3)*6144 + (16*ss+4*jj)*192 + 32*T}")
                lg.issue(f"wr{2*p+ss}")
def fstep(s_):
    e(f"s_waitcnt lgkmcnt({min(15, lg.n_after(f'wr{s_}'), lg.n_after(f'wr{s_|1}'), lg.n_after(f'fb1_{s_}'), lg.n_after(f'fb0_{s_}'))})")
    if s_ % 2 == 0 and s_//2 + 3 < 12: wload(s_//2 + 3)
    if s_ + 1 < 24:
        breadf(0, s_+1); breadf(1, s_+1)
    for tt in range(2):
        acc = ACC0 + 48*tt
        b = BFR + 4*(2*(s_%2) + tt)
        for T in range(3):
            f = 3*s_ + T
            cc = f"v[{BIAS+16*T}:{BIAS+16*T+15}]" if s_ == 0 else f"v[{acc+16*T}:{acc+16*T+15}]"
            e(f"v_mfma_f32_32x32x16_bf16 v[{acc+16*T}:{acc+16*T+15}], {wfrag(f)}, v[{b}:{b+3}], {cc}")
wtr(0)
breadf(0, 0); breadf(1, 0)
for p in range(12):
    fstep(2*p)
    if p + 1 < 12: wtr(p+1)
    fstep(2*p+1)
stamp()

def epi_steps(t):
    acc = ACC0 + 48*(t % 2)
    steps = []
    for j in range(6):
        def f(j=j):
            for i in range(4*j, 4*j+4):
                e(f"v_cvt_pk_bf16_f32 v{EPI+i}, v{acc+2*i}, v{acc+2*i+1}")
            e(f"ds_write_b128 v{V_STW}, v[{EPI+4*j}:{EPI+4*j+3}] offset:{16*j}")
            lg.issue("ew")
        steps.append(f)
    for j in range(6):
        def f(j=j):
            e(f"ds_read_b128 v[{EPI+4*j}:{EPI+4*j+3}], v{V_STL} offset:{1024*j}")
            lg.issue(f"er{j}")
        steps.append(f)
    for j in range(6):
        def f(j=j):
            if j == 0: e(f"s_add_u32 s{S_SOFF2}, s{S_ROW0}, {t*TILEB}")
            wait_lg(f"er{j}")
            e(f"buffer_store_dwordx4 v[{EPI+4*j}:{EPI+4*j+3}], v{V_QOFF+j}, s[{S_O}:{S_O+3}], s{S_SOFF2} offen nt")
            vm.issue(f"st{t}")
        steps.append(f)
    return steps

e("s_nop 15")
e("s_barrier")
for f in epi_steps(0): f()
for t in range(2, NT):
    c(f"---- tile {t} ----")
    acc = ACC0 + 48*(t % 2)
    wait_vm(f"x{t}")
    e("s_barrier")
    stamp()
    buf = t % R
    for sp in range(8):
        e(f"v_add_u32 v{V_BCUR+sp}, {buf*TILEB}, v{V_BBASE+sp}")
    def bread(s):
        e(f"ds_read_b128 v[{BFR+4*(s%NBF)}:{BFR+4*(s%NBF)+3}], v{V_BCUR+(s%8)} offset:{256*(s//8)}")
        lg.issue(f"b{s}")
    PF = NBF - 1
    for s in range(PF): bread(s)
    ep = epi_steps(t-1) if t > 0 else []
    for s in range(24):
        wait_lg(f"b{s}")
        for T in range(3):
            f = 3*s + T
            cc = f"v[{BIAS+16*T}:{BIAS+16*T+15}]" if s == 0 else f"v[{acc+16*T}:{acc+16*T+15}]"
            e(f"v_mfma_f32_32x32x16_bf16 v[{acc+16*T}:{acc+16*T+15}], {wfrag(f)}, v[{BFR+4*(s%NBF)}:{BFR+4*(s%NBF)+3}], {cc}")
            if T == 0 and s + PF < 24: bread(s + PF)
            if T == 1 and t == 2: dma_one(3 + s//6, s % 6)
            if T == 1 and t == 3 and s < 6: dma_one(7, s)
        if ep and 1 <= s <= 18: ep[s-1]()
    stamp()
e("s_nop 15")
for f in epi_steps(NT-1): f()
stamp()
if INSTR:
    e("s_memrealtime s[58:59]")
    e("s_waitcnt lgkmcnt(0)")
    e("s_sub_u32 s58, s58, s56")
    e("v_mov_b32 v6, s58")
    e(f"buffer_store_dword v6, v7, s[48:51], 0 offen offset:60")
lab("L_end")

src = HEADER
src += f"; @launch grid=({NWG},1,1) block=(256,1,1) lds={LDS}\n"
src += '.amdgcn_target "amdgcn-amd-amdhsa--gfx950"\n.text\n'
src += f".globl {NAME}\n.p2align 8\n.type {NAME},@function\n{NAME}:\n"
src += "\n".join(out) + "\n    s_endpgm\n"
src += f'''.section .rodata,"a"
.p2align 6
.amdhsa_kernel {NAME}
  .amdhsa_next_free_vgpr 512
  .amdhsa_next_free_sgpr 64
  .amdhsa_accum_offset 256
  .amdhsa_group_segment_fixed_size 0
  .amdhsa_kernarg_size 48
  .amdhsa_user_sgpr_count 2
  .amdhsa_user_sgpr_kernarg_segment_ptr 1
  .amdhsa_system_sgpr_workgroup_id_x 1
.end_amdhsa_kernel
'''
open(sys.argv[1], "w").write(src)
```

```python
import sys

NAME = "standalone__standard_2d_1d_3d_conv__vision_kernel"
HEADER = open("standalone__standard_2d_1d_3d_conv__vision.s.ref").read().split("; Override launch")[0]
INSTR = False
AGG = len(sys.argv) > 2

M = 65536; K = 384; N = 384
ROWB = 768
NWG = 256
ROWS_PER_WG = M // NWG
TILE = 32
NT = ROWS_PER_WG // TILE
R = 5
TILEB = TILE * ROWB
STAGE0 = R * TILEB
STAGEW = 6144
LDS = STAGE0 + 4 * STAGEW

out = []
def e(s): out.append("    " + s)
def lab(s): out.append(s + ":")
def c(s): out.append("    ; " + s)

class Cnt:
    def __init__(self): self.ops = []
    def issue(self, tag): self.ops.append(tag)
    def n_after(self, tag):
        idx = max(i for i, t in enumerate(self.ops) if t == tag)
        return len(self.ops) - 1 - idx
vm = Cnt(); lg = Cnt()
def wait_vm(tag):
    n = min(vm.n_after(tag), 63)
    e(f"s_waitcnt vmcnt({n})")
def wait_lg(tag):
    n = vm_n = lg.n_after(tag)
    n = min(n, 15)
    e(f"s_waitcnt lgkmcnt({n})")

stamp_i = [0]
def stamp():
    if not INSTR: return
    i = stamp_i[0]; stamp_i[0] += 1
    e("s_memtime s[44:45]")
    e("s_waitcnt lgkmcnt(0)")
    e(f"v_mov_b32 v6, s44")
    e(f"buffer_store_dword v6, v7, s[48:51], 0 offen offset:{4*i}")
    vm.issue("stamp")

def wfrag(f):
    if f < 64: return f"a[{4*f}:{4*f+3}]"
    b = 224 + 4*(f-64); return f"v[{b}:{b+3}]"
def wfrag_half(f, jj):
    if f < 64: return f"a[{4*f+2*jj}:{4*f+2*jj+1}]"
    b = 224 + 4*(f-64) + 2*jj; return f"v[{b}:{b+1}]"
BIAS = 176
ACC0 = 80
BFR = 64
NBF = 4
EPI = 40
V_LANE = 1
V_T0, V_T1, V_T2, V_T3 = 2, 3, 4, 5
V_XOFF = 8
V_QOFF = 14
V_BBASE = 20
V_BCUR = 28
V_STW = 36
V_STL = 37
V_TRB = 38
V_BOFF = 39
S_X, S_W, S_B, S_O = 8, 12, 16, 20
S_WAVE = 24
S_ROW0 = 25
S_SOFF = 26
S_STAGE = 27
S_TMP = 28
S_M0B = 29
S_SOFF2 = 32
S_WSL = 33

e("s_cmp_ge_u32 s2, 256")
e("s_cbranch_scc1 L_end")
e("s_load_dwordx4 s[36:39], s[0:1], 0")
e("s_load_dwordx4 s[40:43], s[0:1], 16")
e("v_and_b32 v1, 63, v0")
e("v_lshrrev_b32 v2, 6, v0")
e("s_nop 0")
e(f"v_readfirstlane_b32 s{S_WAVE}, v2")
e(f"s_mul_i32 s{S_ROW0}, s2, {ROWS_PER_WG*ROWB}")
e(f"s_mul_i32 s{S_STAGE}, s{S_WAVE}, {STAGEW}")
e(f"s_add_u32 s{S_STAGE}, s{S_STAGE}, {STAGE0}")
e(f"s_mul_i32 s{S_M0B}, s{S_WAVE}, {6*1024}")
e("s_waitcnt lgkmcnt(0)")
def srd(d, lo, size):
    e(f"s_mov_b32 s{d}, s{lo}")
    e(f"s_and_b32 s{d+1}, s{lo+1}, 0xffff")
    e(f"s_mov_b32 s{d+2}, {size}")
    e(f"s_mov_b32 s{d+3}, 0x00020000")
srd(S_X, 36, M*ROWB)
srd(S_W, 38, K*ROWB)
srd(S_B, 40, N*2)
srd(S_O, 42, M*ROWB)
if INSTR:
    e("s_load_dwordx2 s[48:49], s[0:1], 32")
    e("s_waitcnt lgkmcnt(0)")
    e("s_and_b32 s49, s49, 0xffff")
    e("s_mov_b32 s50, 0x100000")
    e("s_mov_b32 s51, 0x00020000")
    e(f"s_lshl_b32 s46, s2, 2")
    e(f"s_add_u32 s46, s46, s{S_WAVE}")
    e(f"s_lshl_b32 s46, s46, 7")
    e("v_mov_b32 v7, s46")
if AGG:
    e("s_load_dwordx2 s[48:49], s[0:1], 32")
    e("s_memrealtime s[56:57]")
    e("s_waitcnt lgkmcnt(0)")
    e("s_and_b32 s49, s49, 0xffff")
    e("s_mov_b32 s50, 256")
    e("s_mov_b32 s51, 0x00020000")

e(f"s_mul_i32 s{S_TMP}, s{S_WAVE}, 384")
e(f"s_movk_i32 s30, 1366")
e(f"s_movk_i32 s31, 48")
for j in range(6):
    e(f"v_add_u32 v{V_T0}, s{S_TMP}, v{V_LANE}")
    if j: e(f"v_add_u32 v{V_T0}, {64*j}, v{V_T0}")
    e(f"v_mul_u32_u24 v{V_T1}, s30, v{V_T0}")
    e(f"v_lshrrev_b32 v{V_T1}, 16, v{V_T1}")
    e(f"v_mul_u32_u24 v{V_T2}, s31, v{V_T1}")
    e(f"v_sub_u32 v{V_T2}, v{V_T0}, v{V_T2}")
    e(f"v_and_b32 v{V_T3}, 15, v{V_T1}")
    e(f"v_xor_b32 v{V_T2}, v{V_T2}, v{V_T3}")
    e(f"v_lshlrev_b32 v{V_T2}, 4, v{V_T2}")
    e(f"v_mul_u32_u24 v{V_T1}, 0x300, v{V_T1}")
    e(f"v_add_u32 v{V_XOFF+j}, v{V_T1}, v{V_T2}")

def dma_one(t, j):
    buf = t % R
    if j == 0: e(f"s_add_u32 s{S_SOFF}, s{S_ROW0}, {t*TILEB}")
    e(f"s_add_u32 m0, s{S_M0B}, {buf*TILEB + j*1024}")
    e("s_nop 0")
    e(f"buffer_load_dwordx4 v{V_XOFF+j}, s[{S_X}:{S_X+3}], s{S_SOFF} offen nt lds")
    vm.issue(f"x{t}")
def dma_tile(t):
    for j in range(6): dma_one(t, j)
dma_tile(0); dma_tile(1)

e(f"s_mul_i32 s{S_TMP}, s{S_WAVE}, 192")
e(f"s_movk_i32 s30, 5462")
for j in range(6):
    if j: e(f"v_add_u32 v{V_T0}, {64*j}, v{V_LANE}")
    else: e(f"v_mov_b32 v{V_T0}, v{V_LANE}")
    e(f"v_mul_u32_u24 v{V_T1}, s30, v{V_T0}")
    e(f"v_lshrrev_b32 v{V_T1}, 16, v{V_T1}")
    e(f"v_mul_u32_u24 v{V_T2}, 12, v{V_T1}")
    e(f"v_sub_u32 v{V_T2}, v{V_T0}, v{V_T2}")
    e(f"v_lshlrev_b32 v{V_T2}, 4, v{V_T2}")
    e(f"v_mul_u32_u24 v{V_T1}, 0x300, v{V_T1}")
    e(f"v_add3_u32 v{V_QOFF+j}, v{V_T1}, v{V_T2}, s{S_TMP}")
e(f"v_lshrrev_b32 v{V_T0}, 5, v{V_LANE}")
e(f"v_mul_u32_u24 v{V_T1}, 96, v{V_T0}")
e(f"v_add_u32 v{V_BOFF}, s{S_TMP}, v{V_T1}")
for j in range(6):
    e(f"buffer_load_dwordx4 v[{EPI+4*j}:{EPI+4*j+3}], v{V_BOFF}, s[{S_B}:{S_B+3}], 0 offen offset:{16*j}")
    vm.issue("bias")
WSLOT0 = 3*TILEB
def wload(p):
    e(f"s_mov_b32 s{S_SOFF2}, {p*TILEB}")
    for j in range(6):
        e(f"s_add_u32 m0, s{S_WSL}, {(p%3)*6144 + j*1024}")
        e("s_nop 0")
        e(f"buffer_load_dwordx4 v{V_QOFF+j}, s[{S_W}:{S_W+3}], s{S_SOFF2} offen lds")
        vm.issue(f"w{p}")
e(f"s_mul_i32 s{S_WSL}, s{S_WAVE}, {3*6144}")
e(f"s_add_u32 s{S_WSL}, s{S_WSL}, {WSLOT0}")
for p in range(3):
    wload(p)
dma_tile(2)

e(f"v_lshlrev_b32 v{V_STL}, 4, v{V_LANE}")
e(f"v_add_u32 v{V_STL}, s{S_STAGE}, v{V_STL}")
e(f"v_and_b32 v{V_T1}, 31, v{V_LANE}")
e(f"v_mul_u32_u24 v{V_T1}, 192, v{V_T1}")
e(f"v_mul_u32_u24 v{V_T2}, 96, v{V_T0}")
e(f"v_add3_u32 v{V_STW}, v{V_T1}, v{V_T2}, s{S_STAGE}")
e(f"v_bfe_u32 v{V_T1}, v{V_LANE}, 2, 2")
e(f"v_lshl_add_u32 v{V_T1}, v{V_T0}, 3, v{V_T1}")
e(f"v_mul_u32_u24 v{V_T1}, 192, v{V_T1}")
e(f"v_and_b32 v{V_T2}, 1, v{V_LANE}")
e(f"v_mul_u32_u24 v{V_T2}, 96, v{V_T2}")
e(f"v_add_u32 v{V_T1}, v{V_T1}, v{V_T2}")
e(f"v_bfe_u32 v{V_T2}, v{V_LANE}, 1, 1")
e(f"v_bfe_u32 v{V_T3}, v{V_LANE}, 4, 1")
e(f"v_lshl_add_u32 v{V_T2}, v{V_T3}, 1, v{V_T2}")
e(f"v_lshlrev_b32 v{V_T2}, 3, v{V_T2}")
e(f"v_add3_u32 v{V_TRB}, v{V_T1}, v{V_T2}, s{S_WSL}")
e(f"v_and_b32 v{V_T1}, 31, v{V_LANE}")
e(f"v_and_b32 v{V_T2}, 15, v{V_LANE}")
e(f"v_xor_b32 v{V_T2}, v{V_T2}, v{V_T0}")
e(f"v_lshlrev_b32 v{V_T2}, 4, v{V_T2}")
e(f"v_mul_u32_u24 v{V_T1}, 0x300, v{V_T1}")
e(f"v_add_u32 v{V_BBASE}, v{V_T1}, v{V_T2}")
for sp in range(1, 8):
    e(f"v_xor_b32 v{V_BBASE+sp}, {32*sp}, v{V_BBASE}")
wait_vm("bias")
for i in range(24):
    e(f"v_lshlrev_b32 v{BIAS+2*i}, 16, v{EPI+i}")
    e(f"v_and_b32 v{BIAS+2*i+1}, 0xffff0000, v{EPI+i}")
stamp()
wait_vm("x1")
e("s_barrier")
for sp in range(8):
    e(f"v_add_u32 v{V_BCUR+sp}, {TILEB}, v{V_BBASE+sp}")
def breadf(tt, s):
    b = BFR + 4*(2*(s%2) + tt)
    a = (V_BBASE if tt == 0 else V_BCUR) + (s%8)
    e(f"ds_read_b128 v[{b}:{b+3}], v{a} offset:{256*(s//8)}")
    lg.issue(f"fb{tt}_{s}")
def wtr(p):
    wait_vm(f"w{p}")
    for ss in range(2):
        for T in range(3):
            f = (2*p+ss)*3 + T
            for jj in range(2):
                e(f"ds_read_b64_tr_b16 {wfrag_half(f, jj)}, v{V_TRB} offset:{(p%3)*6144 + (16*ss+4*jj)*192 + 32*T}")
                lg.issue(f"wr{2*p+ss}")
def fstep(s_):
    e(f"s_waitcnt lgkmcnt({min(15, lg.n_after(f'wr{s_}'), lg.n_after(f'wr{s_|1}'), lg.n_after(f'fb1_{s_}'), lg.n_after(f'fb0_{s_}'))})")
    if s_ % 2 == 0 and s_//2 + 3 < 12: wload(s_//2 + 3)
    if s_ + 1 < 24:
        breadf(0, s_+1); breadf(1, s_+1)
    for tt in range(2):
        acc = ACC0 + 48*tt
        b = BFR + 4*(2*(s_%2) + tt)
        for T in range(3):
            f = 3*s_ + T
            cc = f"v[{BIAS+16*T}:{BIAS+16*T+15}]" if s_ == 0 else f"v[{acc+16*T}:{acc+16*T+15}]"
            e(f"v_mfma_f32_32x32x16_bf16 v[{acc+16*T}:{acc+16*T+15}], {wfrag(f)}, v[{b}:{b+3}], {cc}")
wtr(0)
breadf(0, 0); breadf(1, 0)
for p in range(12):
    fstep(2*p)
    if p + 1 < 12: wtr(p+1)
    fstep(2*p+1)
stamp()

def epi_steps(t):
    acc = ACC0 + 48*(t % 2)
    steps = []
    for j in range(6):
        def f(j=j):
            for i in range(4*j, 4*j+4):
                e(f"v_cvt_pk_bf16_f32 v{EPI+i}, v{acc+2*i}, v{acc+2*i+1}")
            e(f"ds_write_b128 v{V_STW}, v[{EPI+4*j}:{EPI+4*j+3}] offset:{16*j}")
            lg.issue("ew")
        steps.append(f)
    for j in range(6):
        def f(j=j):
            e(f"ds_read_b128 v[{EPI+4*j}:{EPI+4*j+3}], v{V_STL} offset:{1024*j}")
            lg.issue(f"er{j}")
        steps.append(f)
    for j in range(6):
        def f(j=j):
            if j == 0: e(f"s_add_u32 s{S_SOFF2}, s{S_ROW0}, {t*TILEB}")
            wait_lg(f"er{j}")
            e(f"buffer_store_dwordx4 v[{EPI+4*j}:{EPI+4*j+3}], v{V_QOFF+j}, s[{S_O}:{S_O+3}], s{S_SOFF2} offen nt")
            vm.issue(f"st{t}")
        steps.append(f)
    return steps

e("s_nop 15")
e("s_barrier")
for f in epi_steps(0): f()
for t in range(2, NT):
    c(f"---- tile {t} ----")
    acc = ACC0 + 48*(t % 2)
    wait_vm(f"x{t}")
    e("s_barrier")
    stamp()
    buf = t % R
    for sp in range(8):
        e(f"v_add_u32 v{V_BCUR+sp}, {buf*TILEB}, v{V_BBASE+sp}")
    def bread(s):
        e(f"ds_read_b128 v[{BFR+4*(s%NBF)}:{BFR+4*(s%NBF)+3}], v{V_BCUR+(s%8)} offset:{256*(s//8)}")
        lg.issue(f"b{s}")
    PF = NBF - 1
    for s in range(PF): bread(s)
    ep = epi_steps(t-1) if t > 0 else []
    for s in range(24):
        wait_lg(f"b{s}")
        for T in range(3):
            f = 3*s + T
            cc = f"v[{BIAS+16*T}:{BIAS+16*T+15}]" if s == 0 else f"v[{acc+16*T}:{acc+16*T+15}]"
            e(f"v_mfma_f32_32x32x16_bf16 v[{acc+16*T}:{acc+16*T+15}], {wfrag(f)}, v[{BFR+4*(s%NBF)}:{BFR+4*(s%NBF)+3}], {cc}")
            if T == 0 and s + PF < 24: bread(s + PF)
            if T == 1 and t == 2: dma_one(3 + s//6, s % 6)
            if T == 1 and t == 3 and s < 6: dma_one(7, s)
        if ep and 1 <= s <= 18: ep[s-1]()
    stamp()
e("s_nop 15")
for f in epi_steps(NT-1): f()
if AGG:
    e("s_waitcnt vmcnt(0)")
    e("s_memrealtime s[58:59]")
    e("s_waitcnt lgkmcnt(0)")
    e("s_mov_b64 exec, 1")
    e("v_mov_b32 v7, 0")
    e("s_not_b32 s60, s56")
    e("v_mov_b32 v6, s60")
    e("buffer_atomic_umax v6, v7, s[48:51], 0 offen offset:0")
    e("v_mov_b32 v6, s58")
    e("buffer_atomic_umax v6, v7, s[48:51], 0 offen offset:4")
    e("s_sub_u32 s60, s58, s56")
    e("v_mov_b32 v6, s60")
    e("buffer_atomic_umax v6, v7, s[48:51], 0 offen offset:8")
    e("v_mov_b32 v6, s56")
    e("buffer_atomic_umax v6, v7, s[48:51], 0 offen offset:12")
    e("v_mov_b32 v6, s60")
    e("buffer_atomic_add v6, v7, s[48:51], 0 offen offset:16")
lab("L_end")

src = HEADER
src += f"; @launch grid=({NWG},1,1) block=(256,1,1) lds={LDS}\n"
src += '.amdgcn_target "amdgcn-amd-amdhsa--gfx950"\n.text\n'
src += f".globl {NAME}\n.p2align 8\n.type {NAME},@function\n{NAME}:\n"
src += "\n".join(out) + "\n    s_endpgm\n"
src += f'''.section .rodata,"a"
.p2align 6
.amdhsa_kernel {NAME}
  .amdhsa_next_free_vgpr 512
  .amdhsa_next_free_sgpr 64
  .amdhsa_accum_offset 256
  .amdhsa_group_segment_fixed_size 0
  .amdhsa_kernarg_size 48
  .amdhsa_user_sgpr_count 2
  .amdhsa_user_sgpr_kernarg_segment_ptr 1
  .amdhsa_system_sgpr_workgroup_id_x 1
.end_amdhsa_kernel
'''
open(sys.argv[1], "w").write(src)
```

```python
import sys

NAME = "standalone__standard_2d_1d_3d_conv__vision_kernel"
HEADER = open("standalone__standard_2d_1d_3d_conv__vision.s.ref").read().split("; Override launch")[0]
INSTR = False
AGG = len(sys.argv) > 2

M = 65536; K = 384; N = 384
ROWB = 768
NWG = 256
ROWS_PER_WG = M // NWG
TILE = 32
NT = ROWS_PER_WG // TILE
R = 5
TILEB = TILE * ROWB
STAGE0 = R * TILEB
STAGEW = 6144
LDS = STAGE0 + 4 * STAGEW

out = []
def e(s): out.append("    " + s)
def lab(s): out.append(s + ":")
def c(s): out.append("    ; " + s)

class Cnt:
    def __init__(self): self.ops = []
    def issue(self, tag): self.ops.append(tag)
    def n_after(self, tag):
        idx = max(i for i, t in enumerate(self.ops) if t == tag)
        return len(self.ops) - 1 - idx
vm = Cnt(); lg = Cnt()
def wait_vm(tag):
    n = min(vm.n_after(tag), 63)
    e(f"s_waitcnt vmcnt({n})")
def wait_lg(tag):
    n = vm_n = lg.n_after(tag)
    n = min(n, 15)
    e(f"s_waitcnt lgkmcnt({n})")

stamp_i = [0]
def stamp():
    if not INSTR: return
    i = stamp_i[0]; stamp_i[0] += 1
    e("s_memtime s[44:45]")
    e("s_waitcnt lgkmcnt(0)")
    e(f"v_mov_b32 v6, s44")
    e(f"buffer_store_dword v6, v7, s[48:51], 0 offen offset:{4*i}")
    vm.issue("stamp")

def wfrag(f):
    if f < 64: return f"a[{4*f}:{4*f+3}]"
    b = 224 + 4*(f-64); return f"v[{b}:{b+3}]"
def wfrag_half(f, jj):
    if f < 64: return f"a[{4*f+2*jj}:{4*f+2*jj+1}]"
    b = 224 + 4*(f-64) + 2*jj; return f"v[{b}:{b+1}]"
BIAS = 176
ACC0 = 80
BFR = 64
NBF = 4
EPI = 40
V_LANE = 1
V_T0, V_T1, V_T2, V_T3 = 2, 3, 4, 5
V_XOFF = 8
V_QOFF = 14
V_BBASE = 20
V_BCUR = 28
V_STW = 36
V_STL = 37
V_TRB = 38
V_BOFF = 39
S_X, S_W, S_B, S_O = 8, 12, 16, 20
S_WAVE = 24
S_ROW0 = 25
S_SOFF = 26
S_STAGE = 27
S_TMP = 28
S_M0B = 29
S_SOFF2 = 32
S_WSL = 33

e("s_cmp_ge_u32 s2, 256")
e("s_cbranch_scc1 L_end")
e("s_load_dwordx4 s[36:39], s[0:1], 0")
e("s_load_dwordx4 s[40:43], s[0:1], 16")
e("v_and_b32 v1, 63, v0")
e("v_lshrrev_b32 v2, 6, v0")
e("s_nop 0")
e(f"v_readfirstlane_b32 s{S_WAVE}, v2")
e(f"s_mul_i32 s{S_ROW0}, s2, {ROWS_PER_WG*ROWB}")
e(f"s_mul_i32 s{S_STAGE}, s{S_WAVE}, {STAGEW}")
e(f"s_add_u32 s{S_STAGE}, s{S_STAGE}, {STAGE0}")
e(f"s_mul_i32 s{S_M0B}, s{S_WAVE}, {6*1024}")
e("s_waitcnt lgkmcnt(0)")
def srd(d, lo, size):
    e(f"s_mov_b32 s{d}, s{lo}")
    e(f"s_and_b32 s{d+1}, s{lo+1}, 0xffff")
    e(f"s_mov_b32 s{d+2}, {size}")
    e(f"s_mov_b32 s{d+3}, 0x00020000")
srd(S_X, 36, M*ROWB)
srd(S_W, 38, K*ROWB)
srd(S_B, 40, N*2)
srd(S_O, 42, M*ROWB)
if INSTR:
    e("s_load_dwordx2 s[48:49], s[0:1], 32")
    e("s_waitcnt lgkmcnt(0)")
    e("s_and_b32 s49, s49, 0xffff")
    e("s_mov_b32 s50, 0x100000")
    e("s_mov_b32 s51, 0x00020000")
    e(f"s_lshl_b32 s46, s2, 2")
    e(f"s_add_u32 s46, s46, s{S_WAVE}")
    e(f"s_lshl_b32 s46, s46, 7")
    e("v_mov_b32 v7, s46")
if AGG:
    e("s_load_dwordx2 s[48:49], s[0:1], 32")
    e("s_memrealtime s[56:57]")
    e("s_waitcnt lgkmcnt(0)")
    e("s_and_b32 s49, s49, 0xffff")
    e("s_mov_b32 s50, 64")
    e("s_mov_b32 s51, 0x00020000")

e(f"s_mul_i32 s{S_TMP}, s{S_WAVE}, 384")
e(f"s_movk_i32 s30, 1366")
e(f"s_movk_i32 s31, 48")
for j in range(6):
    e(f"v_add_u32 v{V_T0}, s{S_TMP}, v{V_LANE}")
    if j: e(f"v_add_u32 v{V_T0}, {64*j}, v{V_T0}")
    e(f"v_mul_u32_u24 v{V_T1}, s30, v{V_T0}")
    e(f"v_lshrrev_b32 v{V_T1}, 16, v{V_T1}")
    e(f"v_mul_u32_u24 v{V_T2}, s31, v{V_T1}")
    e(f"v_sub_u32 v{V_T2}, v{V_T0}, v{V_T2}")
    e(f"v_and_b32 v{V_T3}, 15, v{V_T1}")
    e(f"v_xor_b32 v{V_T2}, v{V_T2}, v{V_T3}")
    e(f"v_lshlrev_b32 v{V_T2}, 4, v{V_T2}")
    e(f"v_mul_u32_u24 v{V_T1}, 0x300, v{V_T1}")
    e(f"v_add_u32 v{V_XOFF+j}, v{V_T1}, v{V_T2}")

def dma_one(t, j):
    buf = t % R
    if j == 0: e(f"s_add_u32 s{S_SOFF}, s{S_ROW0}, {t*TILEB}")
    e(f"s_add_u32 m0, s{S_M0B}, {buf*TILEB + j*1024}")
    e("s_nop 0")
    e(f"buffer_load_dwordx4 v{V_XOFF+j}, s[{S_X}:{S_X+3}], s{S_SOFF} offen nt lds")
    vm.issue(f"x{t}")
def dma_tile(t):
    for j in range(6): dma_one(t, j)
dma_tile(0); dma_tile(1)

e(f"s_mul_i32 s{S_TMP}, s{S_WAVE}, 192")
e(f"s_movk_i32 s30, 5462")
for j in range(6):
    if j: e(f"v_add_u32 v{V_T0}, {64*j}, v{V_LANE}")
    else: e(f"v_mov_b32 v{V_T0}, v{V_LANE}")
    e(f"v_mul_u32_u24 v{V_T1}, s30, v{V_T0}")
    e(f"v_lshrrev_b32 v{V_T1}, 16, v{V_T1}")
    e(f"v_mul_u32_u24 v{V_T2}, 12, v{V_T1}")
    e(f"v_sub_u32 v{V_T2}, v{V_T0}, v{V_T2}")
    e(f"v_lshlrev_b32 v{V_T2}, 4, v{V_T2}")
    e(f"v_mul_u32_u24 v{V_T1}, 0x300, v{V_T1}")
    e(f"v_add3_u32 v{V_QOFF+j}, v{V_T1}, v{V_T2}, s{S_TMP}")
e(f"v_lshrrev_b32 v{V_T0}, 5, v{V_LANE}")
e(f"v_mul_u32_u24 v{V_T1}, 96, v{V_T0}")
e(f"v_add_u32 v{V_BOFF}, s{S_TMP}, v{V_T1}")
for j in range(6):
    e(f"buffer_load_dwordx4 v[{EPI+4*j}:{EPI+4*j+3}], v{V_BOFF}, s[{S_B}:{S_B+3}], 0 offen offset:{16*j}")
    vm.issue("bias")
WSLOT0 = 3*TILEB
def wload(p):
    e(f"s_mov_b32 s{S_SOFF2}, {p*TILEB}")
    for j in range(6):
        e(f"s_add_u32 m0, s{S_WSL}, {(p%3)*6144 + j*1024}")
        e("s_nop 0")
        e(f"buffer_load_dwordx4 v{V_QOFF+j}, s[{S_W}:{S_W+3}], s{S_SOFF2} offen lds")
        vm.issue(f"w{p}")
e(f"s_mul_i32 s{S_WSL}, s{S_WAVE}, {3*6144}")
e(f"s_add_u32 s{S_WSL}, s{S_WSL}, {WSLOT0}")
for p in range(3):
    wload(p)
dma_tile(2)

e(f"v_lshlrev_b32 v{V_STL}, 4, v{V_LANE}")
e(f"v_add_u32 v{V_STL}, s{S_STAGE}, v{V_STL}")
e(f"v_and_b32 v{V_T1}, 31, v{V_LANE}")
e(f"v_mul_u32_u24 v{V_T1}, 192, v{V_T1}")
e(f"v_mul_u32_u24 v{V_T2}, 96, v{V_T0}")
e(f"v_add3_u32 v{V_STW}, v{V_T1}, v{V_T2}, s{S_STAGE}")
e(f"v_bfe_u32 v{V_T1}, v{V_LANE}, 2, 2")
e(f"v_lshl_add_u32 v{V_T1}, v{V_T0}, 3, v{V_T1}")
e(f"v_mul_u32_u24 v{V_T1}, 192, v{V_T1}")
e(f"v_and_b32 v{V_T2}, 1, v{V_LANE}")
e(f"v_mul_u32_u24 v{V_T2}, 96, v{V_T2}")
e(f"v_add_u32 v{V_T1}, v{V_T1}, v{V_T2}")
e(f"v_bfe_u32 v{V_T2}, v{V_LANE}, 1, 1")
e(f"v_bfe_u32 v{V_T3}, v{V_LANE}, 4, 1")
e(f"v_lshl_add_u32 v{V_T2}, v{V_T3}, 1, v{V_T2}")
e(f"v_lshlrev_b32 v{V_T2}, 3, v{V_T2}")
e(f"v_add3_u32 v{V_TRB}, v{V_T1}, v{V_T2}, s{S_WSL}")
e(f"v_and_b32 v{V_T1}, 31, v{V_LANE}")
e(f"v_and_b32 v{V_T2}, 15, v{V_LANE}")
e(f"v_xor_b32 v{V_T2}, v{V_T2}, v{V_T0}")
e(f"v_lshlrev_b32 v{V_T2}, 4, v{V_T2}")
e(f"v_mul_u32_u24 v{V_T1}, 0x300, v{V_T1}")
e(f"v_add_u32 v{V_BBASE}, v{V_T1}, v{V_T2}")
for sp in range(1, 8):
    e(f"v_xor_b32 v{V_BBASE+sp}, {32*sp}, v{V_BBASE}")
wait_vm("bias")
for i in range(24):
    e(f"v_lshlrev_b32 v{BIAS+2*i}, 16, v{EPI+i}")
    e(f"v_and_b32 v{BIAS+2*i+1}, 0xffff0000, v{EPI+i}")
stamp()
wait_vm("x1")
e("s_barrier")
for sp in range(8):
    e(f"v_add_u32 v{V_BCUR+sp}, {TILEB}, v{V_BBASE+sp}")
def breadf(tt, s):
    b = BFR + 4*(2*(s%2) + tt)
    a = (V_BBASE if tt == 0 else V_BCUR) + (s%8)
    e(f"ds_read_b128 v[{b}:{b+3}], v{a} offset:{256*(s//8)}")
    lg.issue(f"fb{tt}_{s}")
def wtr(p):
    wait_vm(f"w{p}")
    for ss in range(2):
        for T in range(3):
            f = (2*p+ss)*3 + T
            for jj in range(2):
                e(f"ds_read_b64_tr_b16 {wfrag_half(f, jj)}, v{V_TRB} offset:{(p%3)*6144 + (16*ss+4*jj)*192 + 32*T}")
                lg.issue(f"wr{2*p+ss}")
def fstep(s_):
    e(f"s_waitcnt lgkmcnt({min(15, lg.n_after(f'wr{s_}'), lg.n_after(f'wr{s_|1}'), lg.n_after(f'fb1_{s_}'), lg.n_after(f'fb0_{s_}'))})")
    if s_ % 2 == 0 and s_//2 + 3 < 12: wload(s_//2 + 3)
    if s_ + 1 < 24:
        breadf(0, s_+1); breadf(1, s_+1)
    for tt in range(2):
        acc = ACC0 + 48*tt
        b = BFR + 4*(2*(s_%2) + tt)
        for T in range(3):
            f = 3*s_ + T
            cc = f"v[{BIAS+16*T}:{BIAS+16*T+15}]" if s_ == 0 else f"v[{acc+16*T}:{acc+16*T+15}]"
            e(f"v_mfma_f32_32x32x16_bf16 v[{acc+16*T}:{acc+16*T+15}], {wfrag(f)}, v[{b}:{b+3}], {cc}")
wtr(0)
breadf(0, 0); breadf(1, 0)
for p in range(12):
    fstep(2*p)
    if p + 1 < 12: wtr(p+1)
    fstep(2*p+1)
stamp()

def epi_steps(t):
    acc = ACC0 + 48*(t % 2)
    steps = []
    for j in range(6):
        def f(j=j):
            for i in range(4*j, 4*j+4):
                e(f"v_cvt_pk_bf16_f32 v{EPI+i}, v{acc+2*i}, v{acc+2*i+1}")
            e(f"ds_write_b128 v{V_STW}, v[{EPI+4*j}:{EPI+4*j+3}] offset:{16*j}")
            lg.issue("ew")
        steps.append(f)
    for j in range(6):
        def f(j=j):
            e(f"ds_read_b128 v[{EPI+4*j}:{EPI+4*j+3}], v{V_STL} offset:{1024*j}")
            lg.issue(f"er{j}")
        steps.append(f)
    for j in range(6):
        def f(j=j):
            if j == 0: e(f"s_add_u32 s{S_SOFF2}, s{S_ROW0}, {t*TILEB}")
            wait_lg(f"er{j}")
            e(f"buffer_store_dwordx4 v[{EPI+4*j}:{EPI+4*j+3}], v{V_QOFF+j}, s[{S_O}:{S_O+3}], s{S_SOFF2} offen nt")
            vm.issue(f"st{t}")
        steps.append(f)
    return steps

e("s_nop 15")
e("s_barrier")
for f in epi_steps(0): f()
for t in range(2, NT):
    c(f"---- tile {t} ----")
    acc = ACC0 + 48*(t % 2)
    wait_vm(f"x{t}")
    e("s_barrier")
    stamp()
    buf = t % R
    for sp in range(8):
        e(f"v_add_u32 v{V_BCUR+sp}, {buf*TILEB}, v{V_BBASE+sp}")
    def bread(s):
        e(f"ds_read_b128 v[{BFR+4*(s%NBF)}:{BFR+4*(s%NBF)+3}], v{V_BCUR+(s%8)} offset:{256*(s//8)}")
        lg.issue(f"b{s}")
    PF = NBF - 1
    for s in range(PF): bread(s)
    ep = epi_steps(t-1) if t > 0 else []
    for s in range(24):
        wait_lg(f"b{s}")
        for T in range(3):
            f = 3*s + T
            cc = f"v[{BIAS+16*T}:{BIAS+16*T+15}]" if s == 0 else f"v[{acc+16*T}:{acc+16*T+15}]"
            e(f"v_mfma_f32_32x32x16_bf16 v[{acc+16*T}:{acc+16*T+15}], {wfrag(f)}, v[{BFR+4*(s%NBF)}:{BFR+4*(s%NBF)+3}], {cc}")
            if T == 0 and s + PF < 24: bread(s + PF)
            if T == 1 and t == 2: dma_one(3 + s//6, s % 6)
            if T == 1 and t == 3 and s < 6: dma_one(7, s)
        if ep and 1 <= s <= 18: ep[s-1]()
    stamp()
e("s_nop 15")
for f in epi_steps(NT-1): f()
if AGG:
    e("s_memrealtime s[58:59]")
    e("s_waitcnt vmcnt(0)")
    e("s_memrealtime s[60:61]")
    e("s_waitcnt lgkmcnt(0)")
    e("s_add_u32 s62, s2, 1")
    e("s_and_b32 s63, s62, 63")
    e("s_lshr_b32 s62, s62, 6")
    e("s_sub_u32 s62, s62, 1")
    e("s_lshl_b32 s62, s62, 4")
    e(f"s_or_b32 s63, s63, s{S_WAVE}")
    e("s_cmp_eq_u32 s63, 0")
    e("s_cselect_b32 s62, s62, 0x1000")
    e("v_mov_b32 v7, s62")
    e("v_mov_b32 v2, s56"); e("v_mov_b32 v3, s58"); e("v_mov_b32 v4, s60"); e("v_mov_b32 v5, 0")
    e("buffer_store_dwordx4 v[2:5], v7, s[48:51], 0 offen")
lab("L_end")

src = HEADER
src += f"; @launch grid=({NWG},1,1) block=(256,1,1) lds={LDS}\n"
src += '.amdgcn_target "amdgcn-amd-amdhsa--gfx950"\n.text\n'
src += f".globl {NAME}\n.p2align 8\n.type {NAME},@function\n{NAME}:\n"
src += "\n".join(out) + "\n    s_endpgm\n"
src += f'''.section .rodata,"a"
.p2align 6
.amdhsa_kernel {NAME}
  .amdhsa_next_free_vgpr 512
  .amdhsa_next_free_sgpr 64
  .amdhsa_accum_offset 256
  .amdhsa_group_segment_fixed_size 0
  .amdhsa_kernarg_size 48
  .amdhsa_user_sgpr_count 2
  .amdhsa_user_sgpr_kernarg_segment_ptr 1
  .amdhsa_system_sgpr_workgroup_id_x 1
.end_amdhsa_kernel
'''
open(sys.argv[1], "w").write(src)
```

```python
import sys

NAME = "standalone__standard_2d_1d_3d_conv__vision_kernel"
HEADER = open("standalone__standard_2d_1d_3d_conv__vision.s.ref").read().split("; Override launch")[0]
INSTR = len(sys.argv) > 2

M = 65536; K = 384; N = 384
ROWB = 768
NWG = 256
ROWS_PER_WG = M // NWG
TILE = 32
NT = ROWS_PER_WG // TILE
R = 5
TILEB = TILE * ROWB
STAGE0 = R * TILEB
STAGEW = 6144
LDS = 163840
NSL = 5

out = []
def e(s): out.append("    " + s)
def lab(s): out.append(s + ":")
def c(s): out.append("    ; " + s)

class Cnt:
    def __init__(self): self.ops = []
    def issue(self, tag): self.ops.append(tag)
    def n_after(self, tag):
        idx = max(i for i, t in enumerate(self.ops) if t == tag)
        return len(self.ops) - 1 - idx
vm = Cnt(); lg = Cnt()
def wait_vm(tag):
    n = min(vm.n_after(tag), 63)
    e(f"s_waitcnt vmcnt({n})")
def wait_lg(tag):
    n = vm_n = lg.n_after(tag)
    n = min(n, 15)
    e(f"s_waitcnt lgkmcnt({n})")

stamp_i = [0]
def stamp():
    if not INSTR: return
    i = stamp_i[0]; stamp_i[0] += 1
    e("s_memtime s[44:45]")
    e("s_waitcnt lgkmcnt(0)")
    e(f"v_mov_b32 v6, s44")
    e(f"buffer_store_dword v6, v7, s[48:51], 0 offen offset:{4*i}")
    vm.issue("stamp")

def wfrag(f):
    if f < 64: return f"a[{4*f}:{4*f+3}]"
    b = 224 + 4*(f-64); return f"v[{b}:{b+3}]"
def wfrag_half(f, jj):
    if f < 64: return f"a[{4*f+2*jj}:{4*f+2*jj+1}]"
    b = 224 + 4*(f-64) + 2*jj; return f"v[{b}:{b+1}]"
BIAS = 176
ACC0 = 80
BFR = 64
NBF = 4
EPI = 40
V_LANE = 1
V_T0, V_T1, V_T2, V_T3 = 2, 3, 4, 5
V_XOFF = 8
V_QOFF = 14
V_BBASE = 20
V_BCUR = 28
V_STW = 36
V_STL = 37
V_TRB = 38
V_BOFF = 39
S_X, S_W, S_B, S_O = 8, 12, 16, 20
S_WAVE = 24
S_ROW0 = 25
S_SOFF = 26
S_STAGE = 27
S_TMP = 28
S_M0B = 29
S_SOFF2 = 32
S_WSL = 33

e("s_cmp_ge_u32 s2, 256")
e("s_cbranch_scc1 L_end")
e("s_load_dwordx4 s[36:39], s[0:1], 0")
e("s_load_dwordx4 s[40:43], s[0:1], 16")
e("v_and_b32 v1, 63, v0")
e("v_lshrrev_b32 v2, 6, v0")
e("s_nop 0")
e(f"v_readfirstlane_b32 s{S_WAVE}, v2")
e(f"s_mul_i32 s{S_ROW0}, s2, {ROWS_PER_WG*ROWB}")
e(f"s_mul_i32 s{S_STAGE}, s{S_WAVE}, {STAGEW}")
e(f"s_add_u32 s{S_STAGE}, s{S_STAGE}, {STAGE0}")
e(f"s_mul_i32 s{S_M0B}, s{S_WAVE}, {6*1024}")
e("s_waitcnt lgkmcnt(0)")
def srd(d, lo, size):
    e(f"s_mov_b32 s{d}, s{lo}")
    e(f"s_and_b32 s{d+1}, s{lo+1}, 0xffff")
    e(f"s_mov_b32 s{d+2}, {size}")
    e(f"s_mov_b32 s{d+3}, 0x00020000")
srd(S_X, 36, M*ROWB)
srd(S_W, 38, K*ROWB)
srd(S_B, 40, N*2)
srd(S_O, 42, M*ROWB)
if INSTR:
    e("s_load_dwordx2 s[48:49], s[0:1], 32")
    e("s_waitcnt lgkmcnt(0)")
    e("s_and_b32 s49, s49, 0xffff")
    e("s_mov_b32 s50, 0x100000")
    e("s_mov_b32 s51, 0x00020000")
    e(f"s_lshl_b32 s46, s2, 2")
    e(f"s_add_u32 s46, s46, s{S_WAVE}")
    e(f"s_lshl_b32 s46, s46, 7")
    e("v_mov_b32 v7, s46")
stamp()

e(f"s_mul_i32 s{S_TMP}, s{S_WAVE}, 384")
e(f"s_movk_i32 s30, 1366")
e(f"s_movk_i32 s31, 48")
for j in range(6):
    e(f"v_add_u32 v{V_T0}, s{S_TMP}, v{V_LANE}")
    if j: e(f"v_add_u32 v{V_T0}, {64*j}, v{V_T0}")
    e(f"v_mul_u32_u24 v{V_T1}, s30, v{V_T0}")
    e(f"v_lshrrev_b32 v{V_T1}, 16, v{V_T1}")
    e(f"v_mul_u32_u24 v{V_T2}, s31, v{V_T1}")
    e(f"v_sub_u32 v{V_T2}, v{V_T0}, v{V_T2}")
    e(f"v_and_b32 v{V_T3}, 15, v{V_T1}")
    e(f"v_xor_b32 v{V_T2}, v{V_T2}, v{V_T3}")
    e(f"v_lshlrev_b32 v{V_T2}, 4, v{V_T2}")
    e(f"v_mul_u32_u24 v{V_T1}, 0x300, v{V_T1}")
    e(f"v_add_u32 v{V_XOFF+j}, v{V_T1}, v{V_T2}")

def dma_one(t, j):
    buf = t % R
    if j == 0: e(f"s_add_u32 s{S_SOFF}, s{S_ROW0}, {t*TILEB}")
    e(f"s_add_u32 m0, s{S_M0B}, {buf*TILEB + j*1024}")
    e("s_nop 0")
    e(f"buffer_load_dwordx4 v{V_XOFF+j}, s[{S_X}:{S_X+3}], s{S_SOFF} offen nt lds")
    vm.issue(f"x{t}")
def dma_tile(t):
    for j in range(6): dma_one(t, j)
dma_tile(0); dma_tile(1)

e(f"s_mul_i32 s{S_TMP}, s{S_WAVE}, 192")
e(f"s_movk_i32 s30, 5462")
for j in range(6):
    if j: e(f"v_add_u32 v{V_T0}, {64*j}, v{V_LANE}")
    else: e(f"v_mov_b32 v{V_T0}, v{V_LANE}")
    e(f"v_mul_u32_u24 v{V_T1}, s30, v{V_T0}")
    e(f"v_lshrrev_b32 v{V_T1}, 16, v{V_T1}")
    e(f"v_mul_u32_u24 v{V_T2}, 12, v{V_T1}")
    e(f"v_sub_u32 v{V_T2}, v{V_T0}, v{V_T2}")
    e(f"v_lshlrev_b32 v{V_T2}, 4, v{V_T2}")
    e(f"v_mul_u32_u24 v{V_T1}, 0x300, v{V_T1}")
    e(f"v_add3_u32 v{V_QOFF+j}, v{V_T1}, v{V_T2}, s{S_TMP}")
e(f"v_lshrrev_b32 v{V_T0}, 5, v{V_LANE}")
e(f"v_mul_u32_u24 v{V_T1}, 96, v{V_T0}")
e(f"v_add_u32 v{V_BOFF}, s{S_TMP}, v{V_T1}")
for j in range(6):
    e(f"buffer_load_dwordx4 v[{EPI+4*j}:{EPI+4*j+3}], v{V_BOFF}, s[{S_B}:{S_B+3}], 0 offen offset:{16*j}")
    vm.issue("bias")
WSLOT0 = 4*TILEB
def wload(p):
    e(f"s_mov_b32 s{S_SOFF2}, {p*16*ROWB}")
    for j in range(3):
        e(f"s_add_u32 m0, s{S_WSL}, {(p%NSL)*3072 + j*1024}")
        e("s_nop 0")
        e(f"buffer_load_dwordx4 v{V_QOFF+j}, s[{S_W}:{S_W+3}], s{S_SOFF2} offen lds")
        vm.issue(f"w{p}")
e(f"s_mul_i32 s{S_WSL}, s{S_WAVE}, 16384")
e(f"s_add_u32 s{S_WSL}, s{S_WSL}, {WSLOT0}")
for p in range(NSL):
    wload(p)
dma_tile(2); dma_tile(3)

e(f"v_lshlrev_b32 v{V_STL}, 4, v{V_LANE}")
e(f"v_add_u32 v{V_STL}, s{S_STAGE}, v{V_STL}")
e(f"v_and_b32 v{V_T1}, 31, v{V_LANE}")
e(f"v_mul_u32_u24 v{V_T1}, 192, v{V_T1}")
e(f"v_mul_u32_u24 v{V_T2}, 96, v{V_T0}")
e(f"v_add3_u32 v{V_STW}, v{V_T1}, v{V_T2}, s{S_STAGE}")
e(f"v_bfe_u32 v{V_T1}, v{V_LANE}, 2, 2")
e(f"v_lshl_add_u32 v{V_T1}, v{V_T0}, 3, v{V_T1}")
e(f"v_mul_u32_u24 v{V_T1}, 192, v{V_T1}")
e(f"v_and_b32 v{V_T2}, 1, v{V_LANE}")
e(f"v_mul_u32_u24 v{V_T2}, 96, v{V_T2}")
e(f"v_add_u32 v{V_T1}, v{V_T1}, v{V_T2}")
e(f"v_bfe_u32 v{V_T2}, v{V_LANE}, 1, 1")
e(f"v_bfe_u32 v{V_T3}, v{V_LANE}, 4, 1")
e(f"v_lshl_add_u32 v{V_T2}, v{V_T3}, 1, v{V_T2}")
e(f"v_lshlrev_b32 v{V_T2}, 3, v{V_T2}")
e(f"v_add3_u32 v{V_TRB}, v{V_T1}, v{V_T2}, s{S_WSL}")
e(f"v_and_b32 v{V_T1}, 31, v{V_LANE}")
e(f"v_and_b32 v{V_T2}, 15, v{V_LANE}")
e(f"v_xor_b32 v{V_T2}, v{V_T2}, v{V_T0}")
e(f"v_lshlrev_b32 v{V_T2}, 4, v{V_T2}")
e(f"v_mul_u32_u24 v{V_T1}, 0x300, v{V_T1}")
e(f"v_add_u32 v{V_BBASE}, v{V_T1}, v{V_T2}")
for sp in range(1, 8):
    e(f"v_xor_b32 v{V_BBASE+sp}, {32*sp}, v{V_BBASE}")
wait_vm("bias")
for i in range(24):
    e(f"v_lshlrev_b32 v{BIAS+2*i}, 16, v{EPI+i}")
    e(f"v_and_b32 v{BIAS+2*i+1}, 0xffff0000, v{EPI+i}")
stamp()
wait_vm("x1")
e("s_barrier")
for sp in range(8):
    e(f"v_add_u32 v{V_BCUR+sp}, {TILEB}, v{V_BBASE+sp}")
def breadf(tt, s):
    b = BFR + 4*(2*(s%2) + tt)
    a = (V_BBASE if tt == 0 else V_BCUR) + (s%8)
    e(f"ds_read_b128 v[{b}:{b+3}], v{a} offset:{256*(s//8)}")
    lg.issue(f"fb{tt}_{s}")
def wtr(p):
    wait_vm(f"w{p}")
    for T in range(3):
        f = p*3 + T
        for jj in range(2):
            e(f"ds_read_b64_tr_b16 {wfrag_half(f, jj)}, v{V_TRB} offset:{(p%NSL)*3072 + (4*jj)*192 + 32*T}")
            lg.issue(f"wr{p}")
def fstep(s_):
    e(f"s_waitcnt lgkmcnt({min(15, lg.n_after(f'wr{s_}'), lg.n_after(f'fb1_{s_}'), lg.n_after(f'fb0_{s_}'))})")
    if s_ + NSL < 24: wload(s_ + NSL)
    if s_ + 1 < 24:
        breadf(0, s_+1); breadf(1, s_+1)
    for tt in range(2):
        acc = ACC0 + 48*tt
        b = BFR + 4*(2*(s_%2) + tt)
        for T in range(3):
            f = 3*s_ + T
            cc = f"v[{BIAS+16*T}:{BIAS+16*T+15}]" if s_ == 0 else f"v[{acc+16*T}:{acc+16*T+15}]"
            e(f"v_mfma_f32_32x32x16_bf16 v[{acc+16*T}:{acc+16*T+15}], {wfrag(f)}, v[{b}:{b+3}], {cc}")
        if tt == 0 and s_ + 1 < 24: wtr(s_ + 1)
wtr(0)
breadf(0, 0); breadf(1, 0)
for s_ in range(24):
    fstep(s_)
stamp()

def epi_steps(t):
    acc = ACC0 + 48*(t % 2)
    steps = []
    for j in range(6):
        def f(j=j):
            for i in range(4*j, 4*j+4):
                e(f"v_cvt_pk_bf16_f32 v{EPI+i}, v{acc+2*i}, v{acc+2*i+1}")
            e(f"ds_write_b128 v{V_STW}, v[{EPI+4*j}:{EPI+4*j+3}] offset:{16*j}")
            lg.issue("ew")
        steps.append(f)
    for j in range(6):
        def f(j=j):
            e(f"ds_read_b128 v[{EPI+4*j}:{EPI+4*j+3}], v{V_STL} offset:{1024*j}")
            lg.issue(f"er{j}")
        steps.append(f)
    for j in range(6):
        def f(j=j):
            if j == 0: e(f"s_add_u32 s{S_SOFF2}, s{S_ROW0}, {t*TILEB}")
            wait_lg(f"er{j}")
            e(f"buffer_store_dwordx4 v[{EPI+4*j}:{EPI+4*j+3}], v{V_QOFF+j}, s[{S_O}:{S_O+3}], s{S_SOFF2} offen nt")
            vm.issue(f"st{t}")
        steps.append(f)
    return steps

e("s_nop 15")
e("s_barrier")
for t_ in (4, 5, 6): dma_tile(t_)
for f in epi_steps(0): f()
for t in range(2, NT):
    c(f"---- tile {t} ----")
    acc = ACC0 + 48*(t % 2)
    wait_vm(f"x{t}")
    e("s_barrier")
    stamp()
    buf = t % R
    for sp in range(8):
        e(f"v_add_u32 v{V_BCUR+sp}, {buf*TILEB}, v{V_BBASE+sp}")
    def bread(s):
        e(f"ds_read_b128 v[{BFR+4*(s%NBF)}:{BFR+4*(s%NBF)+3}], v{V_BCUR+(s%8)} offset:{256*(s//8)}")
        lg.issue(f"b{s}")
    PF = NBF - 1
    for s in range(PF): bread(s)
    ep = epi_steps(t-1) if t > 0 else []
    for s in range(24):
        wait_lg(f"b{s}")
        for T in range(3):
            f = 3*s + T
            cc = f"v[{BIAS+16*T}:{BIAS+16*T+15}]" if s == 0 else f"v[{acc+16*T}:{acc+16*T+15}]"
            e(f"v_mfma_f32_32x32x16_bf16 v[{acc+16*T}:{acc+16*T+15}], {wfrag(f)}, v[{BFR+4*(s%NBF)}:{BFR+4*(s%NBF)+3}], {cc}")
            if T == 0 and s + PF < 24: bread(s + PF)
            if T == 1 and t == 3 and s < 6: dma_one(7, s)
        if ep and 1 <= s <= 18: ep[s-1]()
    stamp()
e("s_nop 15")
for f in epi_steps(NT-1): f()
stamp()
lab("L_end")

src = HEADER
src += f"; @launch grid=({NWG},1,1) block=(256,1,1) lds={LDS}\n"
src += '.amdgcn_target "amdgcn-amd-amdhsa--gfx950"\n.text\n'
src += f".globl {NAME}\n.p2align 8\n.type {NAME},@function\n{NAME}:\n"
src += "\n".join(out) + "\n    s_endpgm\n"
src += f'''.section .rodata,"a"
.p2align 6
.amdhsa_kernel {NAME}
  .amdhsa_next_free_vgpr 512
  .amdhsa_next_free_sgpr 64
  .amdhsa_accum_offset 256
  .amdhsa_group_segment_fixed_size 0
  .amdhsa_kernarg_size 48
  .amdhsa_user_sgpr_count 2
  .amdhsa_user_sgpr_kernarg_segment_ptr 1
  .amdhsa_system_sgpr_workgroup_id_x 1
.end_amdhsa_kernel
'''
open(sys.argv[1], "w").write(src)
```

```python
import sys

NAME = "standalone__standard_2d_1d_3d_conv__vision_kernel"
HEADER = open("standalone__standard_2d_1d_3d_conv__vision.s.ref").read().split("; Override launch")[0]
INSTR = len(sys.argv) > 2

M = 65536; K = 384; N = 384
ROWB = 768
NWG = 256
ROWS_PER_WG = M // NWG
TILE = 32
NT = ROWS_PER_WG // TILE
R = 5
TILEB = TILE * ROWB
STAGE0 = R * TILEB
STAGEW = 6144
LDS = 163840
NSL = 5

out = []
def e(s): out.append("    " + s)
def lab(s): out.append(s + ":")
def c(s): out.append("    ; " + s)

class Cnt:
    def __init__(self): self.ops = []
    def issue(self, tag): self.ops.append(tag)
    def n_after(self, tag):
        idx = max(i for i, t in enumerate(self.ops) if t == tag)
        return len(self.ops) - 1 - idx
vm = Cnt(); lg = Cnt()
def wait_vm(tag):
    n = min(vm.n_after(tag), 63)
    e(f"s_waitcnt vmcnt({n})")
def wait_lg(tag):
    n = vm_n = lg.n_after(tag)
    n = min(n, 15)
    e(f"s_waitcnt lgkmcnt({n})")

stamp_i = [0]
def stamp():
    if not INSTR: return
    i = stamp_i[0]; stamp_i[0] += 1
    e("s_memtime s[44:45]")
    e("s_waitcnt lgkmcnt(0)")
    e(f"v_mov_b32 v6, s44")
    e(f"buffer_store_dword v6, v7, s[48:51], 0 offen offset:{4*i}")
    vm.issue("stamp")

def wfrag(f):
    if f < 64: return f"a[{4*f}:{4*f+3}]"
    b = 224 + 4*(f-64); return f"v[{b}:{b+3}]"
def wfrag_half(f, jj):
    if f < 64: return f"a[{4*f+2*jj}:{4*f+2*jj+1}]"
    b = 224 + 4*(f-64) + 2*jj; return f"v[{b}:{b+1}]"
BIAS = 176
ACC0 = 80
BFR = 64
NBF = 4
EPI = 40
V_LANE = 1
V_T0, V_T1, V_T2, V_T3 = 2, 3, 4, 5
V_XOFF = 8
V_QOFF = 14
V_BBASE = 20
V_BCUR = 28
V_STW = 36
V_STL = 37
V_TRB = 38
V_BOFF = 39
S_X, S_W, S_B, S_O = 8, 12, 16, 20
S_WAVE = 24
S_ROW0 = 25
S_SOFF = 26
S_STAGE = 27
S_TMP = 28
S_M0B = 29
S_SOFF2 = 32
S_WSL = 33

e("s_cmp_ge_u32 s2, 256")
e("s_cbranch_scc1 L_end")
e("s_load_dwordx4 s[36:39], s[0:1], 0")
e("s_load_dwordx4 s[40:43], s[0:1], 16")
e("v_and_b32 v1, 63, v0")
e("v_lshrrev_b32 v2, 6, v0")
e("s_nop 0")
e(f"v_readfirstlane_b32 s{S_WAVE}, v2")
e(f"s_mul_i32 s{S_ROW0}, s2, {ROWS_PER_WG*ROWB}")
e(f"s_mul_i32 s{S_STAGE}, s{S_WAVE}, {STAGEW}")
e(f"s_add_u32 s{S_STAGE}, s{S_STAGE}, {STAGE0}")
e(f"s_mul_i32 s{S_M0B}, s{S_WAVE}, {6*1024}")
e("s_waitcnt lgkmcnt(0)")
def srd(d, lo, size):
    e(f"s_mov_b32 s{d}, s{lo}")
    e(f"s_and_b32 s{d+1}, s{lo+1}, 0xffff")
    e(f"s_mov_b32 s{d+2}, {size}")
    e(f"s_mov_b32 s{d+3}, 0x00020000")
srd(S_X, 36, M*ROWB)
srd(S_W, 38, K*ROWB)
srd(S_B, 40, N*2)
srd(S_O, 42, M*ROWB)
if INSTR:
    e("s_load_dwordx2 s[48:49], s[0:1], 32")
    e("s_waitcnt lgkmcnt(0)")
    e("s_and_b32 s49, s49, 0xffff")
    e("s_mov_b32 s50, 0x100000")
    e("s_mov_b32 s51, 0x00020000")
    e(f"s_lshl_b32 s46, s2, 2")
    e(f"s_add_u32 s46, s46, s{S_WAVE}")
    e(f"s_lshl_b32 s46, s46, 7")
    e("s_mov_b32 s50, 64")
    e("v_mov_b32 v7, s46")
stamp()

e(f"s_mul_i32 s{S_TMP}, s{S_WAVE}, 384")
e(f"s_movk_i32 s30, 1366")
e(f"s_movk_i32 s31, 48")
for j in range(6):
    e(f"v_add_u32 v{V_T0}, s{S_TMP}, v{V_LANE}")
    if j: e(f"v_add_u32 v{V_T0}, {64*j}, v{V_T0}")
    e(f"v_mul_u32_u24 v{V_T1}, s30, v{V_T0}")
    e(f"v_lshrrev_b32 v{V_T1}, 16, v{V_T1}")
    e(f"v_mul_u32_u24 v{V_T2}, s31, v{V_T1}")
    e(f"v_sub_u32 v{V_T2}, v{V_T0}, v{V_T2}")
    e(f"v_and_b32 v{V_T3}, 15, v{V_T1}")
    e(f"v_xor_b32 v{V_T2}, v{V_T2}, v{V_T3}")
    e(f"v_lshlrev_b32 v{V_T2}, 4, v{V_T2}")
    e(f"v_mul_u32_u24 v{V_T1}, 0x300, v{V_T1}")
    e(f"v_add_u32 v{V_XOFF+j}, v{V_T1}, v{V_T2}")

def dma_one(t, j):
    buf = t % R
    if j == 0: e(f"s_add_u32 s{S_SOFF}, s{S_ROW0}, {t*TILEB}")
    e(f"s_add_u32 m0, s{S_M0B}, {buf*TILEB + j*1024}")
    e("s_nop 0")
    e(f"buffer_load_dwordx4 v{V_XOFF+j}, s[{S_X}:{S_X+3}], s{S_SOFF} offen nt lds")
    vm.issue(f"x{t}")
def dma_tile(t):
    for j in range(6): dma_one(t, j)
dma_tile(0); dma_tile(1)

e(f"s_mul_i32 s{S_TMP}, s{S_WAVE}, 192")
e(f"s_movk_i32 s30, 5462")
for j in range(6):
    if j: e(f"v_add_u32 v{V_T0}, {64*j}, v{V_LANE}")
    else: e(f"v_mov_b32 v{V_T0}, v{V_LANE}")
    e(f"v_mul_u32_u24 v{V_T1}, s30, v{V_T0}")
    e(f"v_lshrrev_b32 v{V_T1}, 16, v{V_T1}")
    e(f"v_mul_u32_u24 v{V_T2}, 12, v{V_T1}")
    e(f"v_sub_u32 v{V_T2}, v{V_T0}, v{V_T2}")
    e(f"v_lshlrev_b32 v{V_T2}, 4, v{V_T2}")
    e(f"v_mul_u32_u24 v{V_T1}, 0x300, v{V_T1}")
    e(f"v_add3_u32 v{V_QOFF+j}, v{V_T1}, v{V_T2}, s{S_TMP}")
e(f"v_lshrrev_b32 v{V_T0}, 5, v{V_LANE}")
e(f"v_mul_u32_u24 v{V_T1}, 96, v{V_T0}")
e(f"v_add_u32 v{V_BOFF}, s{S_TMP}, v{V_T1}")
for j in range(6):
    e(f"buffer_load_dwordx4 v[{EPI+4*j}:{EPI+4*j+3}], v{V_BOFF}, s[{S_B}:{S_B+3}], 0 offen offset:{16*j}")
    vm.issue("bias")
WSLOT0 = 4*TILEB
def wload(p):
    e(f"s_mov_b32 s{S_SOFF2}, {p*16*ROWB}")
    for j in range(3):
        e(f"s_add_u32 m0, s{S_WSL}, {(p%NSL)*3072 + j*1024}")
        e("s_nop 0")
        e(f"buffer_load_dwordx4 v{V_QOFF+j}, s[{S_W}:{S_W+3}], s{S_SOFF2} offen lds")
        vm.issue(f"w{p}")
e(f"s_mul_i32 s{S_WSL}, s{S_WAVE}, 16384")
e(f"s_add_u32 s{S_WSL}, s{S_WSL}, {WSLOT0}")
for p in range(NSL):
    wload(p)
dma_tile(2); dma_tile(3)

e(f"v_lshlrev_b32 v{V_STL}, 4, v{V_LANE}")
e(f"v_add_u32 v{V_STL}, s{S_STAGE}, v{V_STL}")
e(f"v_and_b32 v{V_T1}, 31, v{V_LANE}")
e(f"v_mul_u32_u24 v{V_T1}, 192, v{V_T1}")
e(f"v_mul_u32_u24 v{V_T2}, 96, v{V_T0}")
e(f"v_add3_u32 v{V_STW}, v{V_T1}, v{V_T2}, s{S_STAGE}")
e(f"v_bfe_u32 v{V_T1}, v{V_LANE}, 2, 2")
e(f"v_lshl_add_u32 v{V_T1}, v{V_T0}, 3, v{V_T1}")
e(f"v_mul_u32_u24 v{V_T1}, 192, v{V_T1}")
e(f"v_and_b32 v{V_T2}, 1, v{V_LANE}")
e(f"v_mul_u32_u24 v{V_T2}, 96, v{V_T2}")
e(f"v_add_u32 v{V_T1}, v{V_T1}, v{V_T2}")
e(f"v_bfe_u32 v{V_T2}, v{V_LANE}, 1, 1")
e(f"v_bfe_u32 v{V_T3}, v{V_LANE}, 4, 1")
e(f"v_lshl_add_u32 v{V_T2}, v{V_T3}, 1, v{V_T2}")
e(f"v_lshlrev_b32 v{V_T2}, 3, v{V_T2}")
e(f"v_add3_u32 v{V_TRB}, v{V_T1}, v{V_T2}, s{S_WSL}")
e(f"v_and_b32 v{V_T1}, 31, v{V_LANE}")
e(f"v_and_b32 v{V_T2}, 15, v{V_LANE}")
e(f"v_xor_b32 v{V_T2}, v{V_T2}, v{V_T0}")
e(f"v_lshlrev_b32 v{V_T2}, 4, v{V_T2}")
e(f"v_mul_u32_u24 v{V_T1}, 0x300, v{V_T1}")
e(f"v_add_u32 v{V_BBASE}, v{V_T1}, v{V_T2}")
for sp in range(1, 8):
    e(f"v_xor_b32 v{V_BBASE+sp}, {32*sp}, v{V_BBASE}")
wait_vm("bias")
for i in range(24):
    e(f"v_lshlrev_b32 v{BIAS+2*i}, 16, v{EPI+i}")
    e(f"v_and_b32 v{BIAS+2*i+1}, 0xffff0000, v{EPI+i}")
stamp()
wait_vm("x1")
e("s_barrier")
for sp in range(8):
    e(f"v_add_u32 v{V_BCUR+sp}, {TILEB}, v{V_BBASE+sp}")
def breadf(tt, s):
    b = BFR + 4*(2*(s%2) + tt)
    a = (V_BBASE if tt == 0 else V_BCUR) + (s%8)
    e(f"ds_read_b128 v[{b}:{b+3}], v{a} offset:{256*(s//8)}")
    lg.issue(f"fb{tt}_{s}")
def wtr(p):
    wait_vm(f"w{p}")
    for T in range(3):
        f = p*3 + T
        for jj in range(2):
            e(f"ds_read_b64_tr_b16 {wfrag_half(f, jj)}, v{V_TRB} offset:{(p%NSL)*3072 + (4*jj)*192 + 32*T}")
            lg.issue(f"wr{p}")
def fstep(s_):
    e(f"s_waitcnt lgkmcnt({min(15, lg.n_after(f'wr{s_}'), lg.n_after(f'fb1_{s_}'), lg.n_after(f'fb0_{s_}'))})")
    if s_ + NSL < 24: wload(s_ + NSL)
    if s_ + 1 < 24:
        breadf(0, s_+1); breadf(1, s_+1)
    for tt in range(2):
        acc = ACC0 + 48*tt
        b = BFR + 4*(2*(s_%2) + tt)
        for T in range(3):
            f = 3*s_ + T
            cc = f"v[{BIAS+16*T}:{BIAS+16*T+15}]" if s_ == 0 else f"v[{acc+16*T}:{acc+16*T+15}]"
            e(f"v_mfma_f32_32x32x16_bf16 v[{acc+16*T}:{acc+16*T+15}], {wfrag(f)}, v[{b}:{b+3}], {cc}")
        if tt == 0 and s_ + 1 < 24: wtr(s_ + 1)
wtr(0)
breadf(0, 0); breadf(1, 0)
for s_ in range(24):
    fstep(s_)
stamp()

def epi_steps(t):
    acc = ACC0 + 48*(t % 2)
    steps = []
    for j in range(6):
        def f(j=j):
            for i in range(4*j, 4*j+4):
                e(f"v_cvt_pk_bf16_f32 v{EPI+i}, v{acc+2*i}, v{acc+2*i+1}")
            e(f"ds_write_b128 v{V_STW}, v[{EPI+4*j}:{EPI+4*j+3}] offset:{16*j}")
            lg.issue("ew")
        steps.append(f)
    for j in range(6):
        def f(j=j):
            e(f"ds_read_b128 v[{EPI+4*j}:{EPI+4*j+3}], v{V_STL} offset:{1024*j}")
            lg.issue(f"er{j}")
        steps.append(f)
    for j in range(6):
        def f(j=j):
            if j == 0: e(f"s_add_u32 s{S_SOFF2}, s{S_ROW0}, {t*TILEB}")
            wait_lg(f"er{j}")
            e(f"buffer_store_dwordx4 v[{EPI+4*j}:{EPI+4*j+3}], v{V_QOFF+j}, s[{S_O}:{S_O+3}], s{S_SOFF2} offen nt")
            vm.issue(f"st{t}")
        steps.append(f)
    return steps

e("s_nop 15")
e("s_barrier")
for t_ in (4, 5, 6): dma_tile(t_)
for f in epi_steps(0): f()
for t in range(2, NT):
    c(f"---- tile {t} ----")
    acc = ACC0 + 48*(t % 2)
    wait_vm(f"x{t}")
    e("s_barrier")
    stamp()
    buf = t % R
    for sp in range(8):
        e(f"v_add_u32 v{V_BCUR+sp}, {buf*TILEB}, v{V_BBASE+sp}")
    def bread(s):
        e(f"ds_read_b128 v[{BFR+4*(s%NBF)}:{BFR+4*(s%NBF)+3}], v{V_BCUR+(s%8)} offset:{256*(s//8)}")
        lg.issue(f"b{s}")
    PF = NBF - 1
    for s in range(PF): bread(s)
    ep = epi_steps(t-1) if t > 0 else []
    for s in range(24):
        wait_lg(f"b{s}")
        for T in range(3):
            f = 3*s + T
            cc = f"v[{BIAS+16*T}:{BIAS+16*T+15}]" if s == 0 else f"v[{acc+16*T}:{acc+16*T+15}]"
            e(f"v_mfma_f32_32x32x16_bf16 v[{acc+16*T}:{acc+16*T+15}], {wfrag(f)}, v[{BFR+4*(s%NBF)}:{BFR+4*(s%NBF)+3}], {cc}")
            if T == 0 and s + PF < 24: bread(s + PF)
            if T == 1 and t == 3 and s < 6: dma_one(7, s)
        if ep and 1 <= s <= 18: ep[s-1]()
    stamp()
e("s_nop 15")
for f in epi_steps(NT-1): f()
stamp()
lab("L_end")

src = HEADER
src += f"; @launch grid=({NWG},1,1) block=(256,1,1) lds={LDS}\n"
src += '.amdgcn_target "amdgcn-amd-amdhsa--gfx950"\n.text\n'
src += f".globl {NAME}\n.p2align 8\n.type {NAME},@function\n{NAME}:\n"
src += "\n".join(out) + "\n    s_endpgm\n"
src += f'''.section .rodata,"a"
.p2align 6
.amdhsa_kernel {NAME}
  .amdhsa_next_free_vgpr 512
  .amdhsa_next_free_sgpr 64
  .amdhsa_accum_offset 256
  .amdhsa_group_segment_fixed_size 0
  .amdhsa_kernarg_size 48
  .amdhsa_user_sgpr_count 2
  .amdhsa_user_sgpr_kernarg_segment_ptr 1
  .amdhsa_system_sgpr_workgroup_id_x 1
.end_amdhsa_kernel
'''
open(sys.argv[1], "w").write(src)
```

```python
import sys

NAME = "standalone__standard_2d_1d_3d_conv__vision_kernel"
HEADER = open("standalone__standard_2d_1d_3d_conv__vision.s.ref").read().split("; Override launch")[0]
INSTR = len(sys.argv) > 2

M = 65536; K = 384; N = 384
ROWB = 768
NWG = 256
ROWS_PER_WG = M // NWG
TILE = 32
NT = ROWS_PER_WG // TILE
R = 5
TILEB = TILE * ROWB
STAGE0 = R * TILEB
STAGEW = 6144
LDS = 163840
NSL = 5

out = []
def e(s): out.append("    " + s)
def lab(s): out.append(s + ":")
def c(s): out.append("    ; " + s)

class Cnt:
    def __init__(self): self.ops = []
    def issue(self, tag): self.ops.append(tag)
    def n_after(self, tag):
        idx = max(i for i, t in enumerate(self.ops) if t == tag)
        return len(self.ops) - 1 - idx
vm = Cnt(); lg = Cnt()
def wait_vm(tag):
    n = min(vm.n_after(tag), 63)
    e(f"s_waitcnt vmcnt({n})")
def wait_lg(tag):
    n = vm_n = lg.n_after(tag)
    n = min(n, 15)
    e(f"s_waitcnt lgkmcnt({n})")

stamp_i = [0]
def stamp():
    if not INSTR: return
    i = stamp_i[0]; stamp_i[0] += 1
    e("s_memtime s[44:45]")
    e("s_waitcnt lgkmcnt(0)")
    e(f"v_mov_b32 v6, s44")
    e(f"buffer_store_dword v6, v7, s[48:51], 0 offen offset:{4*i}")
    vm.issue("stamp")

def wfrag(f):
    if f < 64: return f"a[{4*f}:{4*f+3}]"
    b = 224 + 4*(f-64); return f"v[{b}:{b+3}]"
def wfrag_half(f, jj):
    if f < 64: return f"a[{4*f+2*jj}:{4*f+2*jj+1}]"
    b = 224 + 4*(f-64) + 2*jj; return f"v[{b}:{b+1}]"
BIAS = 176
ACC0 = 80
BFR = 64
NBF = 4
EPI = 40
V_LANE = 1
V_T0, V_T1, V_T2, V_T3 = 2, 3, 4, 5
V_XOFF = 8
V_QOFF = 14
V_BBASE = 20
V_BCUR = 28
V_STW = 36
V_STL = 37
V_TRB = 38
V_BOFF = 39
S_X, S_W, S_B, S_O = 8, 12, 16, 20
S_WAVE = 24
S_ROW0 = 25
S_SOFF = 26
S_STAGE = 27
S_TMP = 28
S_M0B = 29
S_SOFF2 = 32
S_WSL = 33

e("s_cmp_ge_u32 s2, 256")
e("s_cbranch_scc1 L_end")
e("s_load_dwordx4 s[36:39], s[0:1], 0")
e("s_load_dwordx4 s[40:43], s[0:1], 16")
e("v_and_b32 v1, 63, v0")
e("v_lshrrev_b32 v2, 6, v0")
e("s_nop 0")
e(f"v_readfirstlane_b32 s{S_WAVE}, v2")
e(f"s_mul_i32 s{S_ROW0}, s2, {ROWS_PER_WG*ROWB}")
e(f"s_mul_i32 s{S_STAGE}, s{S_WAVE}, {STAGEW}")
e(f"s_add_u32 s{S_STAGE}, s{S_STAGE}, {STAGE0}")
e(f"s_mul_i32 s{S_M0B}, s{S_WAVE}, {6*1024}")
e("s_waitcnt lgkmcnt(0)")
def srd(d, lo, size):
    e(f"s_mov_b32 s{d}, s{lo}")
    e(f"s_and_b32 s{d+1}, s{lo+1}, 0xffff")
    e(f"s_mov_b32 s{d+2}, {size}")
    e(f"s_mov_b32 s{d+3}, 0x00020000")
srd(S_X, 36, M*ROWB)
srd(S_W, 38, K*ROWB)
srd(S_B, 40, N*2)
srd(S_O, 42, M*ROWB)
if INSTR:
    e("s_load_dwordx2 s[48:49], s[0:1], 32")
    e("s_waitcnt lgkmcnt(0)")
    e("s_and_b32 s49, s49, 0xffff")
    e("s_mov_b32 s50, 0x100000")
    e("s_mov_b32 s51, 0x00020000")
    e(f"s_lshl_b32 s46, s2, 2")
    e(f"s_add_u32 s46, s46, s{S_WAVE}")
    e(f"s_lshl_b32 s46, s46, 7")
    e("v_mov_b32 v7, s46")
stamp()

e("s_lshr_b32 s30, s2, 3"); e("s_and_b32 s30, s30, 31"); e("s_mul_i32 s30, s30, 9216")
e(f"s_mul_i32 s31, s{S_WAVE}, 2304"); e("s_add_u32 s30, s30, s31")
e(f"v_lshlrev_b32 v{V_T0}, 4, v{V_LANE}")
for j in range(3):
    e(f"buffer_load_dwordx4 v[{EPI+4*j}:{EPI+4*j+3}], v{V_T0}, s[{S_W}:{S_W+3}], s30 offen offset:{1024*j if j<2 else 1280}")
    vm.issue("touch")
e(f"s_mul_i32 s{S_TMP}, s{S_WAVE}, 384")
e(f"s_movk_i32 s30, 1366")
e(f"s_movk_i32 s31, 48")
for j in range(6):
    e(f"v_add_u32 v{V_T0}, s{S_TMP}, v{V_LANE}")
    if j: e(f"v_add_u32 v{V_T0}, {64*j}, v{V_T0}")
    e(f"v_mul_u32_u24 v{V_T1}, s30, v{V_T0}")
    e(f"v_lshrrev_b32 v{V_T1}, 16, v{V_T1}")
    e(f"v_mul_u32_u24 v{V_T2}, s31, v{V_T1}")
    e(f"v_sub_u32 v{V_T2}, v{V_T0}, v{V_T2}")
    e(f"v_and_b32 v{V_T3}, 15, v{V_T1}")
    e(f"v_xor_b32 v{V_T2}, v{V_T2}, v{V_T3}")
    e(f"v_lshlrev_b32 v{V_T2}, 4, v{V_T2}")
    e(f"v_mul_u32_u24 v{V_T1}, 0x300, v{V_T1}")
    e(f"v_add_u32 v{V_XOFF+j}, v{V_T1}, v{V_T2}")

def dma_one(t, j):
    buf = t % R
    if j == 0: e(f"s_add_u32 s{S_SOFF}, s{S_ROW0}, {t*TILEB}")
    e(f"s_add_u32 m0, s{S_M0B}, {buf*TILEB + j*1024}")
    e("s_nop 0")
    e(f"buffer_load_dwordx4 v{V_XOFF+j}, s[{S_X}:{S_X+3}], s{S_SOFF} offen nt lds")
    vm.issue(f"x{t}")
def dma_tile(t):
    for j in range(6): dma_one(t, j)
dma_tile(0); dma_tile(1)

e(f"s_mul_i32 s{S_TMP}, s{S_WAVE}, 192")
e(f"s_movk_i32 s30, 5462")
for j in range(6):
    if j: e(f"v_add_u32 v{V_T0}, {64*j}, v{V_LANE}")
    else: e(f"v_mov_b32 v{V_T0}, v{V_LANE}")
    e(f"v_mul_u32_u24 v{V_T1}, s30, v{V_T0}")
    e(f"v_lshrrev_b32 v{V_T1}, 16, v{V_T1}")
    e(f"v_mul_u32_u24 v{V_T2}, 12, v{V_T1}")
    e(f"v_sub_u32 v{V_T2}, v{V_T0}, v{V_T2}")
    e(f"v_lshlrev_b32 v{V_T2}, 4, v{V_T2}")
    e(f"v_mul_u32_u24 v{V_T1}, 0x300, v{V_T1}")
    e(f"v_add3_u32 v{V_QOFF+j}, v{V_T1}, v{V_T2}, s{S_TMP}")
e(f"v_lshrrev_b32 v{V_T0}, 5, v{V_LANE}")
e(f"v_mul_u32_u24 v{V_T1}, 96, v{V_T0}")
e(f"v_add_u32 v{V_BOFF}, s{S_TMP}, v{V_T1}")
for j in range(6):
    e(f"buffer_load_dwordx4 v[{EPI+4*j}:{EPI+4*j+3}], v{V_BOFF}, s[{S_B}:{S_B+3}], 0 offen offset:{16*j}")
    vm.issue("bias")
WSLOT0 = 4*TILEB
def wload(p):
    e(f"s_mov_b32 s{S_SOFF2}, {p*16*ROWB}")
    for j in range(3):
        e(f"s_add_u32 m0, s{S_WSL}, {(p%NSL)*3072 + j*1024}")
        e("s_nop 0")
        e(f"buffer_load_dwordx4 v{V_QOFF+j}, s[{S_W}:{S_W+3}], s{S_SOFF2} offen lds")
        vm.issue(f"w{p}")
e(f"s_mul_i32 s{S_WSL}, s{S_WAVE}, 16384")
e(f"s_add_u32 s{S_WSL}, s{S_WSL}, {WSLOT0}")
for p in range(NSL):
    wload(p)
dma_tile(2); dma_tile(3)

e(f"v_lshlrev_b32 v{V_STL}, 4, v{V_LANE}")
e(f"v_add_u32 v{V_STL}, s{S_STAGE}, v{V_STL}")
e(f"v_and_b32 v{V_T1}, 31, v{V_LANE}")
e(f"v_mul_u32_u24 v{V_T1}, 192, v{V_T1}")
e(f"v_mul_u32_u24 v{V_T2}, 96, v{V_T0}")
e(f"v_add3_u32 v{V_STW}, v{V_T1}, v{V_T2}, s{S_STAGE}")
e(f"v_bfe_u32 v{V_T1}, v{V_LANE}, 2, 2")
e(f"v_lshl_add_u32 v{V_T1}, v{V_T0}, 3, v{V_T1}")
e(f"v_mul_u32_u24 v{V_T1}, 192, v{V_T1}")
e(f"v_and_b32 v{V_T2}, 1, v{V_LANE}")
e(f"v_mul_u32_u24 v{V_T2}, 96, v{V_T2}")
e(f"v_add_u32 v{V_T1}, v{V_T1}, v{V_T2}")
e(f"v_bfe_u32 v{V_T2}, v{V_LANE}, 1, 1")
e(f"v_bfe_u32 v{V_T3}, v{V_LANE}, 4, 1")
e(f"v_lshl_add_u32 v{V_T2}, v{V_T3}, 1, v{V_T2}")
e(f"v_lshlrev_b32 v{V_T2}, 3, v{V_T2}")
e(f"v_add3_u32 v{V_TRB}, v{V_T1}, v{V_T2}, s{S_WSL}")
e(f"v_and_b32 v{V_T1}, 31, v{V_LANE}")
e(f"v_and_b32 v{V_T2}, 15, v{V_LANE}")
e(f"v_xor_b32 v{V_T2}, v{V_T2}, v{V_T0}")
e(f"v_lshlrev_b32 v{V_T2}, 4, v{V_T2}")
e(f"v_mul_u32_u24 v{V_T1}, 0x300, v{V_T1}")
e(f"v_add_u32 v{V_BBASE}, v{V_T1}, v{V_T2}")
for sp in range(1, 8):
    e(f"v_xor_b32 v{V_BBASE+sp}, {32*sp}, v{V_BBASE}")
wait_vm("bias")
for i in range(24):
    e(f"v_lshlrev_b32 v{BIAS+2*i}, 16, v{EPI+i}")
    e(f"v_and_b32 v{BIAS+2*i+1}, 0xffff0000, v{EPI+i}")
stamp()
wait_vm("x1")
e("s_barrier")
for sp in range(8):
    e(f"v_add_u32 v{V_BCUR+sp}, {TILEB}, v{V_BBASE+sp}")
def breadf(tt, s):
    b = BFR + 4*(2*(s%2) + tt)
    a = (V_BBASE if tt == 0 else V_BCUR) + (s%8)
    e(f"ds_read_b128 v[{b}:{b+3}], v{a} offset:{256*(s//8)}")
    lg.issue(f"fb{tt}_{s}")
def wtr(p):
    wait_vm(f"w{p}")
    for T in range(3):
        f = p*3 + T
        for jj in range(2):
            e(f"ds_read_b64_tr_b16 {wfrag_half(f, jj)}, v{V_TRB} offset:{(p%NSL)*3072 + (4*jj)*192 + 32*T}")
            lg.issue(f"wr{p}")
def fstep(s_):
    e(f"s_waitcnt lgkmcnt({min(15, lg.n_after(f'wr{s_}'), lg.n_after(f'fb1_{s_}'), lg.n_after(f'fb0_{s_}'))})")
    if s_ + NSL < 24: wload(s_ + NSL)
    if s_ + 1 < 24:
        breadf(0, s_+1); breadf(1, s_+1)
    for tt in range(2):
        acc = ACC0 + 48*tt
        b = BFR + 4*(2*(s_%2) + tt)
        for T in range(3):
            f = 3*s_ + T
            cc = f"v[{BIAS+16*T}:{BIAS+16*T+15}]" if s_ == 0 else f"v[{acc+16*T}:{acc+16*T+15}]"
            e(f"v_mfma_f32_32x32x16_bf16 v[{acc+16*T}:{acc+16*T+15}], {wfrag(f)}, v[{b}:{b+3}], {cc}")
        if tt == 0 and s_ + 1 < 24: wtr(s_ + 1)
wtr(0)
breadf(0, 0); breadf(1, 0)
for s_ in range(24):
    fstep(s_)
stamp()

def epi_steps(t):
    acc = ACC0 + 48*(t % 2)
    steps = []
    for j in range(6):
        def f(j=j):
            for i in range(4*j, 4*j+4):
                e(f"v_cvt_pk_bf16_f32 v{EPI+i}, v{acc+2*i}, v{acc+2*i+1}")
            e(f"ds_write_b128 v{V_STW}, v[{EPI+4*j}:{EPI+4*j+3}] offset:{16*j}")
            lg.issue("ew")
        steps.append(f)
    for j in range(6):
        def f(j=j):
            e(f"ds_read_b128 v[{EPI+4*j}:{EPI+4*j+3}], v{V_STL} offset:{1024*j}")
            lg.issue(f"er{j}")
        steps.append(f)
    for j in range(6):
        def f(j=j):
            if j == 0: e(f"s_add_u32 s{S_SOFF2}, s{S_ROW0}, {t*TILEB}")
            wait_lg(f"er{j}")
            e(f"buffer_store_dwordx4 v[{EPI+4*j}:{EPI+4*j+3}], v{V_QOFF+j}, s[{S_O}:{S_O+3}], s{S_SOFF2} offen nt")
            vm.issue(f"st{t}")
        steps.append(f)
    return steps

e("s_nop 15")
e("s_barrier")
for t_ in (4, 5, 6): dma_tile(t_)
for f in epi_steps(0): f()
for t in range(2, NT):
    c(f"---- tile {t} ----")
    acc = ACC0 + 48*(t % 2)
    wait_vm(f"x{t}")
    e("s_barrier")
    stamp()
    buf = t % R
    for sp in range(8):
        e(f"v_add_u32 v{V_BCUR+sp}, {buf*TILEB}, v{V_BBASE+sp}")
    def bread(s):
        e(f"ds_read_b128 v[{BFR+4*(s%NBF)}:{BFR+4*(s%NBF)+3}], v{V_BCUR+(s%8)} offset:{256*(s//8)}")
        lg.issue(f"b{s}")
    PF = NBF - 1
    for s in range(PF): bread(s)
    ep = epi_steps(t-1) if t > 0 else []
    for s in range(24):
        wait_lg(f"b{s}")
        for T in range(3):
            f = 3*s + T
            cc = f"v[{BIAS+16*T}:{BIAS+16*T+15}]" if s == 0 else f"v[{acc+16*T}:{acc+16*T+15}]"
            e(f"v_mfma_f32_32x32x16_bf16 v[{acc+16*T}:{acc+16*T+15}], {wfrag(f)}, v[{BFR+4*(s%NBF)}:{BFR+4*(s%NBF)+3}], {cc}")
            if T == 0 and s + PF < 24: bread(s + PF)
            if T == 1 and t == 3 and s < 6: dma_one(7, s)
        if ep and 1 <= s <= 18: ep[s-1]()
    stamp()
e("s_nop 15")
for f in epi_steps(NT-1): f()
stamp()
lab("L_end")

src = HEADER
src += f"; @launch grid=({NWG},1,1) block=(256,1,1) lds={LDS}\n"
src += '.amdgcn_target "amdgcn-amd-amdhsa--gfx950"\n.text\n'
src += f".globl {NAME}\n.p2align 8\n.type {NAME},@function\n{NAME}:\n"
src += "\n".join(out) + "\n    s_endpgm\n"
src += f'''.section .rodata,"a"
.p2align 6
.amdhsa_kernel {NAME}
  .amdhsa_next_free_vgpr 512
  .amdhsa_next_free_sgpr 64
  .amdhsa_accum_offset 256
  .amdhsa_group_segment_fixed_size 0
  .amdhsa_kernarg_size 48
  .amdhsa_user_sgpr_count 2
  .amdhsa_user_sgpr_kernarg_segment_ptr 1
  .amdhsa_system_sgpr_workgroup_id_x 1
.end_amdhsa_kernel
'''
open(sys.argv[1], "w").write(src)
```

```python
import sys

NAME = "standalone__standard_2d_1d_3d_conv__vision_kernel"
HEADER = open("standalone__standard_2d_1d_3d_conv__vision.s.ref").read().split("; Override launch")[0]
INSTR = len(sys.argv) > 2

M = 65536; K = 384; N = 384
ROWB = 768
NWG = 256
ROWS_PER_WG = M // NWG
TILE = 32
NT = ROWS_PER_WG // TILE
R = 5
TILEB = TILE * ROWB
STAGE0 = R * TILEB
STAGEW = 6144
LDS = 163840
NSL = 5

out = []
def e(s): out.append("    " + s)
def lab(s): out.append(s + ":")
def c(s): out.append("    ; " + s)

class Cnt:
    def __init__(self): self.ops = []
    def issue(self, tag): self.ops.append(tag)
    def n_after(self, tag):
        idx = max(i for i, t in enumerate(self.ops) if t == tag)
        return len(self.ops) - 1 - idx
vm = Cnt(); lg = Cnt()
def wait_vm(tag):
    n = min(vm.n_after(tag), 63)
    e(f"s_waitcnt vmcnt({n})")
def wait_lg(tag):
    n = vm_n = lg.n_after(tag)
    n = min(n, 15)
    e(f"s_waitcnt lgkmcnt({n})")

stamp_i = [0]
def stamp():
    if not INSTR: return
    i = stamp_i[0]; stamp_i[0] += 1
    e("s_memtime s[44:45]")
    e("s_waitcnt lgkmcnt(0)")
    e(f"v_mov_b32 v6, s44")
    e(f"buffer_store_dword v6, v7, s[48:51], 0 offen offset:{4*i}")
    vm.issue("stamp")

def wfrag(f):
    if f < 64: return f"a[{4*f}:{4*f+3}]"
    b = 224 + 4*(f-64); return f"v[{b}:{b+3}]"
def wfrag_half(f, jj):
    if f < 64: return f"a[{4*f+2*jj}:{4*f+2*jj+1}]"
    b = 224 + 4*(f-64) + 2*jj; return f"v[{b}:{b+1}]"
BIAS = 176
ACC0 = 80
BFR = 64
NBF = 4
EPI = 40
V_LANE = 1
V_T0, V_T1, V_T2, V_T3 = 2, 3, 4, 5
V_XOFF = 8
V_QOFF = 14
V_BBASE = 20
V_BCUR = 28
V_STW = 36
V_STL = 37
V_TRB = 38
V_BOFF = 39
S_X, S_W, S_B, S_O = 8, 12, 16, 20
S_WAVE = 24
S_ROW0 = 25
S_SOFF = 26
S_STAGE = 27
S_TMP = 28
S_M0B = 29
S_SOFF2 = 32
S_WSL = 33

e("s_cmp_ge_u32 s2, 256")
e("s_cbranch_scc1 L_end")
e("s_load_dwordx4 s[36:39], s[0:1], 0")
e("s_load_dwordx4 s[40:43], s[0:1], 16")
e("v_and_b32 v1, 63, v0")
e("v_lshrrev_b32 v2, 6, v0")
e("s_nop 0")
e(f"v_readfirstlane_b32 s{S_WAVE}, v2")
e(f"s_mul_i32 s{S_ROW0}, s2, {ROWS_PER_WG*ROWB}")
e(f"s_mul_i32 s{S_STAGE}, s{S_WAVE}, {STAGEW}")
e(f"s_add_u32 s{S_STAGE}, s{S_STAGE}, {STAGE0}")
e(f"s_mul_i32 s{S_M0B}, s{S_WAVE}, {6*1024}")
e("s_waitcnt lgkmcnt(0)")
def srd(d, lo, size):
    e(f"s_mov_b32 s{d}, s{lo}")
    e(f"s_and_b32 s{d+1}, s{lo+1}, 0xffff")
    e(f"s_mov_b32 s{d+2}, {size}")
    e(f"s_mov_b32 s{d+3}, 0x00020000")
srd(S_X, 36, M*ROWB)
srd(S_W, 38, K*ROWB)
srd(S_B, 40, N*2)
srd(S_O, 42, M*ROWB)
if INSTR:
    e("s_load_dwordx2 s[48:49], s[0:1], 32")
    e("s_waitcnt lgkmcnt(0)")
    e("s_and_b32 s49, s49, 0xffff")
    e("s_mov_b32 s50, 0x100000")
    e("s_mov_b32 s51, 0x00020000")
    e(f"s_lshl_b32 s46, s2, 2")
    e(f"s_add_u32 s46, s46, s{S_WAVE}")
    e(f"s_lshl_b32 s46, s46, 7")
    e("v_mov_b32 v7, s46")
stamp()

e("s_lshr_b32 s30, s2, 3"); e("s_and_b32 s30, s30, 31"); e("s_mul_i32 s30, s30, 9216")
e(f"s_mul_i32 s31, s{S_WAVE}, 2304"); e("s_add_u32 s30, s30, s31")
e(f"v_lshlrev_b32 v{V_T0}, 4, v{V_LANE}")
for j in range(3):
    e(f"buffer_load_dwordx4 v[{EPI+4*j}:{EPI+4*j+3}], v{V_T0}, s[{S_W}:{S_W+3}], s30 offen offset:{1024*j if j<2 else 1280}")
    vm.issue("touch")
e(f"buffer_load_dword v{EPI+12}, v{V_T0}, s[{S_O}:{S_O+3}], s{S_ROW0} offen")
vm.issue("touch")
e(f"s_mul_i32 s{S_TMP}, s{S_WAVE}, 384")
e(f"s_movk_i32 s30, 1366")
e(f"s_movk_i32 s31, 48")
for j in range(6):
    e(f"v_add_u32 v{V_T0}, s{S_TMP}, v{V_LANE}")
    if j: e(f"v_add_u32 v{V_T0}, {64*j}, v{V_T0}")
    e(f"v_mul_u32_u24 v{V_T1}, s30, v{V_T0}")
    e(f"v_lshrrev_b32 v{V_T1}, 16, v{V_T1}")
    e(f"v_mul_u32_u24 v{V_T2}, s31, v{V_T1}")
    e(f"v_sub_u32 v{V_T2}, v{V_T0}, v{V_T2}")
    e(f"v_and_b32 v{V_T3}, 15, v{V_T1}")
    e(f"v_xor_b32 v{V_T2}, v{V_T2}, v{V_T3}")
    e(f"v_lshlrev_b32 v{V_T2}, 4, v{V_T2}")
    e(f"v_mul_u32_u24 v{V_T1}, 0x300, v{V_T1}")
    e(f"v_add_u32 v{V_XOFF+j}, v{V_T1}, v{V_T2}")

def dma_one(t, j):
    buf = t % R
    if j == 0: e(f"s_add_u32 s{S_SOFF}, s{S_ROW0}, {t*TILEB}")
    e(f"s_add_u32 m0, s{S_M0B}, {buf*TILEB + j*1024}")
    e("s_nop 0")
    e(f"buffer_load_dwordx4 v{V_XOFF+j}, s[{S_X}:{S_X+3}], s{S_SOFF} offen nt lds")
    vm.issue(f"x{t}")
def dma_tile(t):
    for j in range(6): dma_one(t, j)
dma_tile(0); dma_tile(1)

e(f"s_mul_i32 s{S_TMP}, s{S_WAVE}, 192")
e(f"s_movk_i32 s30, 5462")
for j in range(6):
    if j: e(f"v_add_u32 v{V_T0}, {64*j}, v{V_LANE}")
    else: e(f"v_mov_b32 v{V_T0}, v{V_LANE}")
    e(f"v_mul_u32_u24 v{V_T1}, s30, v{V_T0}")
    e(f"v_lshrrev_b32 v{V_T1}, 16, v{V_T1}")
    e(f"v_mul_u32_u24 v{V_T2}, 12, v{V_T1}")
    e(f"v_sub_u32 v{V_T2}, v{V_T0}, v{V_T2}")
    e(f"v_lshlrev_b32 v{V_T2}, 4, v{V_T2}")
    e(f"v_mul_u32_u24 v{V_T1}, 0x300, v{V_T1}")
    e(f"v_add3_u32 v{V_QOFF+j}, v{V_T1}, v{V_T2}, s{S_TMP}")
e(f"v_lshrrev_b32 v{V_T0}, 5, v{V_LANE}")
e(f"v_mul_u32_u24 v{V_T1}, 96, v{V_T0}")
e(f"v_add_u32 v{V_BOFF}, s{S_TMP}, v{V_T1}")
for j in range(6):
    e(f"buffer_load_dwordx4 v[{EPI+4*j}:{EPI+4*j+3}], v{V_BOFF}, s[{S_B}:{S_B+3}], 0 offen offset:{16*j}")
    vm.issue("bias")
WSLOT0 = 4*TILEB
def wload(p):
    e(f"s_mov_b32 s{S_SOFF2}, {p*16*ROWB}")
    for j in range(3):
        e(f"s_add_u32 m0, s{S_WSL}, {(p%NSL)*3072 + j*1024}")
        e("s_nop 0")
        e(f"buffer_load_dwordx4 v{V_QOFF+j}, s[{S_W}:{S_W+3}], s{S_SOFF2} offen lds")
        vm.issue(f"w{p}")
e(f"s_mul_i32 s{S_WSL}, s{S_WAVE}, 16384")
e(f"s_add_u32 s{S_WSL}, s{S_WSL}, {WSLOT0}")
for p in range(NSL):
    wload(p)
dma_tile(2); dma_tile(3)

e(f"v_lshlrev_b32 v{V_STL}, 4, v{V_LANE}")
e(f"v_add_u32 v{V_STL}, s{S_STAGE}, v{V_STL}")
e(f"v_and_b32 v{V_T1}, 31, v{V_LANE}")
e(f"v_mul_u32_u24 v{V_T1}, 192, v{V_T1}")
e(f"v_mul_u32_u24 v{V_T2}, 96, v{V_T0}")
e(f"v_add3_u32 v{V_STW}, v{V_T1}, v{V_T2}, s{S_STAGE}")
e(f"v_bfe_u32 v{V_T1}, v{V_LANE}, 2, 2")
e(f"v_lshl_add_u32 v{V_T1}, v{V_T0}, 3, v{V_T1}")
e(f"v_mul_u32_u24 v{V_T1}, 192, v{V_T1}")
e(f"v_and_b32 v{V_T2}, 1, v{V_LANE}")
e(f"v_mul_u32_u24 v{V_T2}, 96, v{V_T2}")
e(f"v_add_u32 v{V_T1}, v{V_T1}, v{V_T2}")
e(f"v_bfe_u32 v{V_T2}, v{V_LANE}, 1, 1")
e(f"v_bfe_u32 v{V_T3}, v{V_LANE}, 4, 1")
e(f"v_lshl_add_u32 v{V_T2}, v{V_T3}, 1, v{V_T2}")
e(f"v_lshlrev_b32 v{V_T2}, 3, v{V_T2}")
e(f"v_add3_u32 v{V_TRB}, v{V_T1}, v{V_T2}, s{S_WSL}")
e(f"v_and_b32 v{V_T1}, 31, v{V_LANE}")
e(f"v_and_b32 v{V_T2}, 15, v{V_LANE}")
e(f"v_xor_b32 v{V_T2}, v{V_T2}, v{V_T0}")
e(f"v_lshlrev_b32 v{V_T2}, 4, v{V_T2}")
e(f"v_mul_u32_u24 v{V_T1}, 0x300, v{V_T1}")
e(f"v_add_u32 v{V_BBASE}, v{V_T1}, v{V_T2}")
for sp in range(1, 8):
    e(f"v_xor_b32 v{V_BBASE+sp}, {32*sp}, v{V_BBASE}")
wait_vm("bias")
for i in range(24):
    e(f"v_lshlrev_b32 v{BIAS+2*i}, 16, v{EPI+i}")
    e(f"v_and_b32 v{BIAS+2*i+1}, 0xffff0000, v{EPI+i}")
stamp()
wait_vm("x1")
e("s_barrier")
for sp in range(8):
    e(f"v_add_u32 v{V_BCUR+sp}, {TILEB}, v{V_BBASE+sp}")
def breadf(tt, s):
    b = BFR + 4*(2*(s%2) + tt)
    a = (V_BBASE if tt == 0 else V_BCUR) + (s%8)
    e(f"ds_read_b128 v[{b}:{b+3}], v{a} offset:{256*(s//8)}")
    lg.issue(f"fb{tt}_{s}")
def wtr(p):
    wait_vm(f"w{p}")
    for T in range(3):
        f = p*3 + T
        for jj in range(2):
            e(f"ds_read_b64_tr_b16 {wfrag_half(f, jj)}, v{V_TRB} offset:{(p%NSL)*3072 + (4*jj)*192 + 32*T}")
            lg.issue(f"wr{p}")
def fstep(s_):
    e(f"s_waitcnt lgkmcnt({min(15, lg.n_after(f'wr{s_}'), lg.n_after(f'fb1_{s_}'), lg.n_after(f'fb0_{s_}'))})")
    if s_ + NSL < 24: wload(s_ + NSL)
    if s_ + 1 < 24:
        breadf(0, s_+1); breadf(1, s_+1)
    for tt in range(2):
        acc = ACC0 + 48*tt
        b = BFR + 4*(2*(s_%2) + tt)
        for T in range(3):
            f = 3*s_ + T
            cc = f"v[{BIAS+16*T}:{BIAS+16*T+15}]" if s_ == 0 else f"v[{acc+16*T}:{acc+16*T+15}]"
            e(f"v_mfma_f32_32x32x16_bf16 v[{acc+16*T}:{acc+16*T+15}], {wfrag(f)}, v[{b}:{b+3}], {cc}")
        if tt == 0 and s_ + 1 < 24: wtr(s_ + 1)
wtr(0)
breadf(0, 0); breadf(1, 0)
for s_ in range(24):
    fstep(s_)
stamp()

def epi_steps(t):
    acc = ACC0 + 48*(t % 2)
    steps = []
    for j in range(6):
        def f(j=j):
            for i in range(4*j, 4*j+4):
                e(f"v_cvt_pk_bf16_f32 v{EPI+i}, v{acc+2*i}, v{acc+2*i+1}")
            e(f"ds_write_b128 v{V_STW}, v[{EPI+4*j}:{EPI+4*j+3}] offset:{16*j}")
            lg.issue("ew")
        steps.append(f)
    for j in range(6):
        def f(j=j):
            e(f"ds_read_b128 v[{EPI+4*j}:{EPI+4*j+3}], v{V_STL} offset:{1024*j}")
            lg.issue(f"er{j}")
        steps.append(f)
    for j in range(6):
        def f(j=j):
            if j == 0: e(f"s_add_u32 s{S_SOFF2}, s{S_ROW0}, {t*TILEB}")
            wait_lg(f"er{j}")
            e(f"buffer_store_dwordx4 v[{EPI+4*j}:{EPI+4*j+3}], v{V_QOFF+j}, s[{S_O}:{S_O+3}], s{S_SOFF2} offen nt")
            vm.issue(f"st{t}")
        steps.append(f)
    return steps

e("s_nop 15")
e("s_barrier")
for t_ in (4, 5, 6): dma_tile(t_)
for f in epi_steps(0): f()
for t in range(2, NT):
    c(f"---- tile {t} ----")
    acc = ACC0 + 48*(t % 2)
    wait_vm(f"x{t}")
    e("s_barrier")
    stamp()
    buf = t % R
    for sp in range(8):
        e(f"v_add_u32 v{V_BCUR+sp}, {buf*TILEB}, v{V_BBASE+sp}")
    def bread(s):
        e(f"ds_read_b128 v[{BFR+4*(s%NBF)}:{BFR+4*(s%NBF)+3}], v{V_BCUR+(s%8)} offset:{256*(s//8)}")
        lg.issue(f"b{s}")
    PF = NBF - 1
    for s in range(PF): bread(s)
    ep = epi_steps(t-1) if t > 0 else []
    for s in range(24):
        wait_lg(f"b{s}")
        for T in range(3):
            f = 3*s + T
            cc = f"v[{BIAS+16*T}:{BIAS+16*T+15}]" if s == 0 else f"v[{acc+16*T}:{acc+16*T+15}]"
            e(f"v_mfma_f32_32x32x16_bf16 v[{acc+16*T}:{acc+16*T+15}], {wfrag(f)}, v[{BFR+4*(s%NBF)}:{BFR+4*(s%NBF)+3}], {cc}")
            if T == 0 and s + PF < 24: bread(s + PF)
            if T == 1 and t == 3 and s < 6: dma_one(7, s)
        if ep and 1 <= s <= 18: ep[s-1]()
    stamp()
e("s_nop 15")
for f in epi_steps(NT-1): f()
stamp()
lab("L_end")

src = HEADER
src += f"; @launch grid=({NWG},1,1) block=(256,1,1) lds={LDS}\n"
src += '.amdgcn_target "amdgcn-amd-amdhsa--gfx950"\n.text\n'
src += f".globl {NAME}\n.p2align 8\n.type {NAME},@function\n{NAME}:\n"
src += "\n".join(out) + "\n    s_endpgm\n"
src += f'''.section .rodata,"a"
.p2align 6
.amdhsa_kernel {NAME}
  .amdhsa_next_free_vgpr 512
  .amdhsa_next_free_sgpr 64
  .amdhsa_accum_offset 256
  .amdhsa_group_segment_fixed_size 0
  .amdhsa_kernarg_size 48
  .amdhsa_user_sgpr_count 2
  .amdhsa_user_sgpr_kernarg_segment_ptr 1
  .amdhsa_system_sgpr_workgroup_id_x 1
.end_amdhsa_kernel
'''
open(sys.argv[1], "w").write(src)
```
